```python
import torch

def _softmax(x, axis=-1):
    return torch.softmax(x, dim=axis)
def _gelu(x):
    return torch.nn.functional.gelu(x, approximate="tanh")
def _silu(x):
    return torch.nn.functional.silu(x)
def _sigmoid(x):
    return torch.sigmoid(x)
def _layernorm(x, axis=-1, eps=1e-5):
    m = x.mean(dim=axis, keepdim=True)
    v = x.var(dim=axis, keepdim=True, unbiased=False)
    return (x - m) / torch.sqrt(v + eps)
def _scatter_add(tgt, idx, src, axis=0):
    return tgt.clone().index_add_(axis, idx, src)
def _segment_sum(src, seg, n):
    out = torch.zeros((n,) + src.shape[1:], dtype=src.dtype)
    return out.index_add_(0, seg, src)
def _pad(x, pw):
    flat = tuple(v for pair in reversed(pw) for v in pair)
    return torch.nn.functional.pad(x, flat)

kernel_name = 'recurrent_scan__compressed_kv_cla__dense_activation_silu__prompt'

def setup_inputs():

    _w = (lambda a: (lambda t: t.to(torch.bfloat16) if t.is_floating_point() else t)(torch.as_tensor(a)))
    def _A_setup():
        B, H, Sq, Sk, D, M = 1, 32, 2048, 2048, 128, 640
        Dc = 4 * D
        return {
            "x": _w((lambda *s: torch.randn(*s, dtype=torch.bfloat16) * 0.05)(B, Sq, M)),
            "c_kv": _w((lambda *s: torch.randn(*s, dtype=torch.bfloat16) * 0.8)(B, Sk, Dc)),
            "w_q": _w((lambda *s: torch.randn(*s, dtype=torch.bfloat16) * 1.6)(M, H, D) * (M ** -0.5)),
            "w_uk": _w((lambda *s: torch.randn(*s, dtype=torch.bfloat16) * 1.6)(Dc, H, D) * (Dc ** -0.5)),
            "w_uv": _w((lambda *s: torch.randn(*s, dtype=torch.bfloat16) * 0.8)(Dc, H, D) * (Dc ** -0.5)),
            "w_o": _w((lambda *s: torch.randn(*s, dtype=torch.bfloat16) * 0.8)(H, D, M) * ((H * D) ** -0.5)),
        }
    _A_in = _A_setup()

    def _B_setup():
        B, S, D, F = 1, 2048, 640, 1728
        return {
            "x": _w((lambda *s: torch.randn(*s, dtype=torch.bfloat16) * 0.05)(B, S, D)),
            "w1": _w((lambda *s: torch.randn(*s, dtype=torch.bfloat16) * 0.8)(D, F) * (D ** -0.5)),
            "w2": _w((lambda *s: torch.randn(*s, dtype=torch.bfloat16) * 0.2)(F, D) * (F ** -0.5)),
        }
    _B_in = _B_setup()

    return {
        "A_x": _A_in["x"],
        "A_c_kv": _A_in["c_kv"],
        "A_w_q": _A_in["w_q"],
        "A_w_uk": _A_in["w_uk"],
        "A_w_uv": _A_in["w_uv"],
        "A_w_o": _A_in["w_o"],
        "B_x": _B_in["x"],
        "B_w1": _B_in["w1"],
        "B_w2": _B_in["w2"],
    }

def reference(A_x, A_c_kv, A_w_q, A_w_uk, A_w_uv, A_w_o, B_x, B_w1, B_w2):
    def _A_ref(x, c_kv, w_q, w_uk, w_uv, w_o):
        B, Sq, M = x.shape[0], x.shape[1], x.shape[2]
        Sk = c_kv.shape[1]
        H, D = w_q.shape[1], w_q.shape[2]
        q = torch.einsum("bqm,mhd->bhqd", x, w_q)
        k = torch.einsum("bkc,chd->bhkd", c_kv, w_uk)
        v = torch.einsum("bkc,chd->bhkd", c_kv, w_uv)
        scores = torch.einsum("bhqd,bhkd->bhqk", q, k) * (D ** -0.5)
        off = Sk - Sq
        qi = torch.arange(Sq)[:, None]
        kj = torch.arange(Sk)[None, :]
        cmask = kj <= (qi + off)
        scores = torch.where(cmask[None, None], scores, -1e9)
        p = _softmax(scores, axis=-1)
        ctx = torch.einsum("bhqk,bhkd->bhqd", p, v)
        return torch.einsum("bhqd,hdm->bqm", ctx, w_o)

    def _B_ref(x, w1, w2):
        h = torch.einsum("bsd,df->bsf", x, w1)
        h = _silu(h)
        out = torch.einsum("bsf,fd->bsd", h, w2)
        return out

    x = A_x
    xn = _layernorm(x, axis=-1)
    s = _A_ref(xn, A_c_kv, A_w_q, A_w_uk, A_w_uv, A_w_o)
    g = _silu(_B_ref(xn, B_w1, B_w2))
    return x + s * g
```

```python
from core import *
import math, struct
XN_OFF  = 0x0000000
KF_OFF  = 0x0300000
VF_OFF  = 0x0380000
CTX_OFF = 0x2300000
HF_OFF  = 0x3300000
WP_OFF  = 0x3A00000
KA = dict(x=0, ckv=8, wq=16, wuk=24, wuv=32, wo=40, bx=48, w1=56, w2=64, out=72, dbg=80, ws=88)
LOG2E = math.log2(math.e)
C0 = (128 ** -0.5) * LOG2E
def fb(x): return "0x%08x" % struct.unpack('<I', struct.pack('<f', x))[0]
MF = "v_mfma_f32_16x16x32_bf16"
STF = "sc1"

class Em:
    def __init__(self): self.P = []
    def __call__(self, t, **k):
        for l in t.split('\n'):
            l = l.strip()
            if l: self.P.append(Ins(l, **k))
    def ext(self, L): self.P.extend(L)

def srd(e, d, ptr, off_s, num, off_c=0):
    if off_s is None and off_c == 0:
        e(f"s_mov_b32 s{d}, s{ptr}"); e(f"s_mov_b32 s{d+1}, s{ptr+1}")
    elif off_s is None:
        e(f"s_add_u32 s{d}, s{ptr}, {off_c}"); e(f"s_addc_u32 s{d+1}, s{ptr+1}, 0")
    else:
        e(f"s_add_u32 s{d}, s{ptr}, {off_s}"); e(f"s_addc_u32 s{d+1}, s{ptr+1}, 0")
        if off_c:
            e(f"s_add_u32 s{d}, s{d}, {off_c}"); e(f"s_addc_u32 s{d+1}, s{d+1}, 0")
    e(f"s_mov_b32 s{d+2}, {num}"); e(f"s_mov_b32 s{d+3}, 0x20000")

def mf(d, a, b, c):
    return I(f"{MF} {d}, {a}, {b}, {c}")

def at(x, lo=None, hi=None, tgt=None):
    g = x if isinstance(x, list) else [x]
    g[0].lo = lo; g[0].hi = hi; g[0].tgt = tgt
    return g

def pack4(b):
    return [I(f"v_cvt_pk_bf16_f32 v{b+j}, v{b+2*j}, v{b+2*j+1}") for j in range(4)]

ST_OFF = 0x8000000
SB = 64
def stamp(k, real=False):
    return I(f"{'s_memrealtime' if real else 's_memtime'} s[{SB+2*k}:{SB+2*k+1}]")
def stamp_store(e, n, kidx, pws, tmp=250, name=''):
    e("s_waitcnt lgkmcnt(0)")
    e(f"v_mov_b32 v{tmp}, 0")
    for k in range(n): e(f"v_writelane_b32 v{tmp}, s{SB+2*k}, {k}")
    e(f"s_lshl_b32 s60, s2, 7\ns_add_u32 s60, s60, {ST_OFF + kidx * 0x10000}")
    srd(e, 96, pws, "s60", 4 * n)
    e(f"v_mbcnt_lo_u32_b32 v{tmp+1}, -1, 0\nv_mbcnt_hi_u32_b32 v{tmp+1}, -1, v{tmp+1}\nv_lshlrev_b32 v{tmp+1}, 2, v{tmp+1}")
    e(f"s_cmp_eq_u32 s{name}, 0\ns_cselect_b32 s98, s98, 0")
    e(f"buffer_store_dword v{tmp}, v{tmp+1}, s[96:99], 0 offen")
```

```python
import re

REG = re.compile(r'^(-|\|)?([vas])(\d+)\|?$')
RNG = re.compile(r'^-?([vas])\[(\d+):(\d+)\]$')

def regs_of(op):
    op = op.strip()
    m = RNG.match(op)
    if m: return [f"{m.group(1)}{i}" for i in range(int(m.group(2)), int(m.group(3)) + 1)]
    m = REG.match(op)
    if m: return [f"{m.group(2)}{m.group(3)}"]
    if op.startswith('abs(') or op.startswith('-abs('):
        return regs_of(op[op.index('(') + 1:-1])
    if op in ('vcc', 'm0', 'exec', 'scc'): return [op]
    if op in ('vcc_lo', 'vcc_hi'): return ['vcc']
    if op in ('exec_lo', 'exec_hi'): return ['exec']
    return []

TRANS = ('v_exp_f32', 'v_log_f32', 'v_rcp_f32', 'v_rsq_f32', 'v_sqrt_f32', 'v_sin_f32', 'v_cos_f32')

class Ins:
    __slots__ = ('t', 'kind', 'op', 'rd', 'wr', 'cost', 'tag', 'need', 'lo', 'hi', 'tgt', 'ops', 'srcc', 'ab', 'dpp', 'vm', 'lg', 'cover')
    def __init__(self, t, tag=None, need=None):
        self.t = t.strip(); self.tag = tag; self.need = need
        self.lo = None; self.hi = None; self.tgt = None; self.srcc = []; self.ab = []; self.dpp = False
        self.vm = None; self.lg = None; self.cover = 0
        self.parse()
    def __repr__(self): return self.t
    def parse(self):
        t = self.t
        if t.endswith(':'):
            self.kind = 'label'; self.op = ''; self.rd = []; self.wr = []; self.cost = 0; self.ops = []; return
        if t.startswith('.') or t.startswith(';'):
            self.kind = 'dir'; self.op = ''; self.rd = []; self.wr = []; self.cost = 0; self.ops = []; return
        if t.startswith('@need'):
            self.kind = 'need'; self.op = ''; self.rd = []; self.wr = []; self.cost = 1; self.ops = []; return
        sp = t.split(None, 1)
        op = sp[0]; rest = sp[1] if len(sp) > 1 else ''
        base = re.sub(r'_(e32|e64|dpp|sdwa)$', '', op)
        self.op = base
        ops = []; cur = ''; d = 0
        for ch in rest:
            if ch in '[(': d += 1
            if ch in '])': d -= 1
            if ch == ',' and d == 0: ops.append(cur.strip()); cur = ''
            else: cur += ch
        if cur.strip(): ops.append(cur.strip())
        mods = ''
        if ops:
            last = ops[-1].split(None, 1)
            ops[-1] = last[0]; mods = last[1] if len(last) > 1 else ''
        self.ops = ops
        R = [regs_of(o) for o in ops]
        allr = [r for x in R for r in x]
        rd = []; wr = []; cost = 1
        if base.startswith('v_mfma'):
            kind = 'mfma'; wr = R[0]; rd = R[1] + R[2] + R[3]; self.srcc = R[3]; self.ab = R[1] + R[2]; cost = 2
        elif base.startswith('ds_read') :
            kind = 'ds_r'; wr = R[0]; rd = R[1]
        elif base.startswith('ds_write'):
            kind = 'ds_w'; rd = allr
        elif base.startswith('ds_bpermute') or base.startswith('ds_swizzle'):
            kind = 'ds_r'; wr = R[0]; rd = [r for x in R[1:] for r in x]
        elif base.startswith('buffer_load') or base.startswith('global_load'):
            if re.search(r'\blds\b', mods): kind = 'vdma'; rd = allr + ['m0']
            else: kind = 'vload'; wr = R[0]; rd = [r for x in R[1:] for r in x]
            cost = 2
        elif base.startswith('buffer_store') or base.startswith('global_store'):
            kind = 'vstore'; rd = allr; cost = 2
        elif base.startswith('buffer_atomic') or base.startswith('global_atomic'):
            kind = 'vstore'; rd = allr; cost = 2
            if re.search(r'\bsc0\b', mods): kind = 'vload'; wr = R[0]
        elif base in ('buffer_inv', 'buffer_wbl2'):
            kind = 'vstore'; cost = 2
        elif base.startswith('s_load') or base in ('s_memtime', 's_memrealtime'):
            kind = 'smem'; wr = R[0]; rd = [r for x in R[1:] for r in x]
        elif base == 's_waitcnt':
            kind = 'wait'
            m = re.search(r'vmcnt\((\d+)\)', t); self.vm = int(m.group(1)) if m else None
            m = re.search(r'lgkmcnt\((\d+)\)', t); self.lg = int(m.group(1)) if m else None
        elif base == 's_barrier': kind = 'bar'
        elif base == 's_nop': kind = 'nop'; cost = int(ops[0], 0) + 1
        elif base in ('s_endpgm',): kind = 'end'
        elif base == 's_branch' or base.startswith('s_cbranch'):
            kind = 'branch'
            if 'scc' in base: rd = ['scc']
            if 'vcc' in base: rd = ['vcc']
            if 'exec' in base: rd = ['exec']
        elif base in ('s_setprio', 's_sleep'): kind = 'salu'
        elif base.startswith('s_cmp'):
            kind = 'salu'; rd = allr; wr = ['scc']
        elif base.startswith('s_'):
            kind = 'salu'; wr = list(R[0]); rd = [r for x in R[1:] for r in x]
            if base.startswith(('s_add', 's_sub', 's_and', 's_or', 's_xor', 's_lshl', 's_lshr', 's_ashr', 's_min', 's_max', 's_not', 's_bfe', 's_andn2', 's_orn2')): wr.append('scc')
            if base.startswith(('s_addc', 's_subb', 's_cselect', 's_cmov')): rd.append('scc')
            if base.startswith(('s_addk', 's_mulk', 's_cmov', 's_bitset')): rd += R[0]
            if 'saveexec' in base: rd.append('exec'); wr.append('exec')
        elif base.startswith('v_'):
            kind = 'trans' if base in TRANS else 'valu'
            if kind == 'trans': cost = 2
            if base.startswith('v_cmp'):
                wr = R[0]; rd = [r for x in R[1:] for r in x]
            elif base.startswith('v_permlane') and 'swap' in base:
                wr = R[0] + R[1]; rd = R[0] + R[1]
            elif base in ('v_add_co_u32', 'v_sub_co_u32', 'v_addc_co_u32'):
                wr = R[0] + R[1]; rd = [r for x in R[2:] for r in x]
            else:
                wr = R[0]; rd = [r for x in R[1:] for r in x]
                if base.startswith(('v_fmac', 'v_writelane', 'v_dot2c', 'v_pk_fmac')): rd = rd + R[0]
                if base == 'v_cndmask_b32' and len(ops) == 3: rd.append('vcc')
            if op.endswith('_dpp') or 'row_' in mods or 'quad_perm' in mods:
                self.dpp = True; rd = rd + R[0]
            if base.startswith('v_pk_'): cost = 2
        else:
            raise ValueError('cannot parse: ' + t)
        self.kind = kind; self.rd = rd; self.wr = wr; self.cost = cost

def I(t, **k): return Ins(t, **k)
def need(*res, cover=0):
    x = Ins('@need', need=list(res)); x.cover = cover; return x
def vr(b, n, p='v'): return f"{p}{b}" if n == 1 else f"{p}[{b}:{b + n - 1}]"
def rr(p, b, n): return [f"{p}{i}" for i in range(b, b + n)]

MEM = ('ds_r', 'ds_w', 'vload', 'vdma', 'vstore')

def schedule(main, streams, budget=2, name='', verbose=False):
    M = len(main)
    S = []
    for st in streams:
        gs = []
        for g in st:
            if isinstance(g, Ins): g = [g]
            gs.append(g)
        S.append(gs)
    for gs in S:
        h = M - 1
        for g in reversed(gs):
            x = g[0]
            if x.hi is None: x.hi = M - 1
            x.hi = min(x.hi, h); h = x.hi
        l = -1
        for g in gs:
            x = g[0]
            if x.lo is None: x.lo = -1
            x.lo = max(x.lo, l); l = x.lo
            if x.tgt is None: x.tgt = x.lo
            if x.lo > x.hi: raise ValueError(f"{name}: lo>hi for {x} lo={x.lo} hi={x.hi}")
    pos = [0] * len(S)
    out = []; over = 0
    def gcost(g): return sum(x.cost for x in g)
    def ismem(g): return any(x.kind in MEM for x in g)
    for gap in range(-1, M):
        if gap >= 0:
            out.append(main[gap][1])
        nxt_pre = main[gap + 1][0] if gap + 1 < M else []
        room = budget - sum(x.cost for x in nxt_pre) if gap >= 0 else 0
        placed = []; nmem = 0
        while True:
            best = None
            for si, gs in enumerate(S):
                if pos[si] >= len(gs): continue
                g = gs[pos[si]]; x = g[0]
                if x.lo > gap: continue
                forced = x.hi <= gap
                if not forced:
                    if x.tgt > gap: continue
                    if gcost(g) > room and not (gcost(g) > budget and room == budget): continue
                    if ismem(g) and nmem: continue
                key = (0 if forced else 1, x.hi, x.tgt, si)
                if best is None or key < best[0]: best = (key, si, g)
            if best is None: break
            _, si, g = best
            pos[si] += 1; room -= gcost(g)
            if ismem(g): nmem += 1
            placed.append((si, g))
        order = []; rest = []
        seen = set()
        for si, g in placed:
            if ismem(g) and si not in seen and not rest_conflict(rest, g): order.append(g)
            else: rest.append(g); seen.add(si)
        for g in order + rest: out.extend(g)
        if room < 0 and gap >= 0: over += -room
        out.extend(nxt_pre)
    for si, gs in enumerate(S):
        assert pos[si] == len(gs), (name, si, pos[si], len(gs))
    if verbose: print(f"  sched {name}: mfma={M} overflow_slots={over}")
    return out

def rest_conflict(rest, g):
    rd = set(r for x in g for r in x.rd); wr = set(r for x in g for r in x.wr)
    for h in rest:
        for x in h:
            if set(x.wr) & (rd | wr) or set(x.rd) & wr: return True
    return False

def spread(groups, lo, hi):
    gs = [[g] if isinstance(g, Ins) else g for g in groups]
    tot = sum(sum(x.cost for x in g) for g in gs) or 1
    acc = 0
    for g in gs:
        g[0].tgt = int(lo + (hi - lo) * acc / tot + 1e-9)
        acc += sum(x.cost for x in g)
    return gs

def build_cfg(P):
    labels = {x.t[:-1]: i for i, x in enumerate(P) if x.kind == 'label'}
    succ = [[] for _ in P]
    for i, x in enumerate(P):
        if x.kind == 'end': continue
        if x.kind == 'branch':
            succ[i].append(labels[x.ops[0]])
            if x.op != 's_branch' and i + 1 < len(P): succ[i].append(i + 1)
        elif i + 1 < len(P): succ[i].append(i + 1)
    pred = [[] for _ in P]
    for i, s in enumerate(succ):
        for j in s: pred[j].append(i)
    return succ, pred

def insert_waits(P):
    succ, pred = build_cfg(P)
    n = len(P)
    W = [[None, None] for _ in P]
    IN = [None] * n
    IN[0] = ({}, {})
    work = [0]
    def step(i, st):
        vm, lg = dict(st[0]), dict(st[1])
        x = P[i]
        touch = set(x.rd) | set(x.wr)
        if x.kind == 'need': touch = set(x.need)
        def req(d):
            k = [d[r] for r in touch if r in d]
            return min(k) if k else None
        a = req(vm); b = req(lg)
        if x.kind in ('vload',):
            k = [vm[r] for r in x.rd if r in vm]; a = min(k) if k else None
        if x.kind == 'ds_r':
            k = [lg[r] for r in x.rd if r in lg]; b = min(k) if k else None
        if 'SMEM' in lg and b is not None: b = 0
        if a is not None: a = min(a, 63); W[i][0] = a if W[i][0] is None else min(W[i][0], a)
        if b is not None: b = min(b, 15); W[i][1] = b if W[i][1] is None else min(W[i][1], b)
        a, b = W[i]
        if x.kind == 'wait':
            if x.vm is not None: a = x.vm if a is None else min(a, x.vm)
            if x.lg is not None: b = x.lg if b is None else min(b, x.lg)
        if a is not None: vm = {r: k for r, k in vm.items() if k < a}
        if b is not None:
            if b == 0: lg = {}
            elif 'SMEM' not in lg: lg = {r: k for r, k in lg.items() if k < b}
        if x.kind in ('vload', 'vdma', 'vstore'):
            vm = {r: k + 1 for r, k in vm.items()}
            for r in x.wr: vm[r] = 0
            if x.tag: vm[x.tag] = 0
        elif x.kind in ('ds_r', 'ds_w'):
            lg = {r: k + 1 for r, k in lg.items()}
            for r in x.wr: lg[r] = 0
            if x.tag: lg[x.tag] = 0
        elif x.kind == 'smem':
            lg['SMEM'] = 0
            for r in x.wr: lg[r] = 0
        return vm, lg
    def join(a, b):
        ch = False; res = []
        for da, db in zip(a, b):
            d = dict(da)
            for r, k in db.items():
                if r not in d or k < d[r]: d[r] = k; ch = True
            res.append(d)
        return tuple(res), ch
    for it in range(50):
        IN = [None] * n; IN[0] = ({}, {})
        Wold = [list(w) for w in W]
        work = [0]; cnt = 0
        while work:
            i = work.pop(); cnt += 1
            while True:
                o = step(i, IN[i])
                nx = None
                for j in succ[i]:
                    if IN[j] is None: IN[j] = o; ch = True
                    else: IN[j], ch = join(IN[j], o)
                    if ch:
                        if nx is None: nx = j
                        else: work.append(j)
                if nx is None: break
                i = nx
        if W == Wold: break
    out = []; nins = 0
    for i, x in enumerate(P):
        a, b = W[i]
        if a is not None or b is not None:
            if x.kind == 'wait':
                a = x.vm if a is None else (a if x.vm is None else min(a, x.vm))
                b = x.lg if b is None else (b if x.lg is None else min(b, x.lg))
            s = 's_waitcnt' + (f' vmcnt({a})' if a is not None else '') + (f' lgkmcnt({b})' if b is not None else '')
            w = Ins(s)
            if x.kind not in ('need', 'wait'): nins += 1; w.tag = 'auto'
            out.append(w)
            if x.kind == 'wait': continue
        if x.kind != 'need': out.append(x)
    return out, nins

def states(x):
    if x.kind in ('label', 'dir', 'need'): return 0
    if x.kind == 'nop': return x.cost
    return 1

def hazard_need(p, x):
    n = 0
    pw = set(p.wr); xr = set(x.rd); xw = set(x.wr)
    pv = p.kind in ('valu', 'trans'); xv = x.kind in ('valu', 'trans')
    xmem = x.kind in MEM
    if p.kind == 'mfma':
        big = '32x32' in p.op
        if x.kind == 'mfma':
            if pw & set(x.ab): n = max(n, 12 if big else 8)
            if pw & set(x.srcc) and not (list(p.wr) == list(x.srcc) and p.op == x.op): n = max(n, 10 if big else 6)
        elif xv or xmem:
            if pw & (xr | xw): n = max(n, 12 if big else 8)
        if xv and set(p.srcc) & xw: n = max(n, 7 if big else 3)
    if pv:
        vw = set(r for r in pw if r[0] in 'va' and r != 'vcc')
        sw = pw - vw
        if x.kind == 'mfma' and vw & xr: n = max(n, 2)
        if x.kind == 'mfma' and 'exec' in pw: n = max(n, 4)
        if p.kind == 'trans' and x.kind == 'valu' and vw & xr: n = max(n, 1)
        if xv and x.op in ('v_readlane_b32', 'v_readfirstlane_b32') and vw & xr: n = max(n, 1)
        if xv and (x.dpp or x.op.startswith('v_permlane')) and vw & xr: n = max(n, 2)
        if xv and sw & xr: n = max(n, 4 if x.op in ('v_readlane_b32', 'v_writelane_b32') else 2)
        if x.kind in ('vload', 'vdma', 'vstore') and sw & xr: n = max(n, 5)
        if x.kind == 'salu' and sw & xr: n = max(n, 1)
    if p.kind == 'salu' and 'm0' in pw and x.kind == 'vdma': n = max(n, 1)
    if p.kind == 'vstore' and ('x4' in p.op or 'x3' in p.op):
        data = set(regs_of(p.ops[0] if p.op.startswith('buffer') else p.ops[1]))
        if data & xw: n = max(n, 2 if xv else 1)
    return n

def insert_nops(P):
    total = 0
    for it in range(4):
        succ, pred = build_cfg(P)
        add = {}
        for i, x in enumerate(P):
            if x.kind in ('label', 'dir', 'nop', 'wait', 'bar', 'branch', 'end'): continue
            worst = 0
            stack = [(j, 0) for j in pred[i]]; seen = {}
            while stack:
                j, d = stack.pop()
                if d >= 12 or seen.get(j, 99) <= d: continue
                seen[j] = d
                p = P[j]
                h = hazard_need(p, x)
                if h - d > worst: worst = h - d
                d2 = d + states(p) + add.get(j, 0)
                for k in pred[j]: stack.append((k, d2))
            if worst > 0: add[i] = worst
        if not add: break
        out = []
        for i, x in enumerate(P):
            if i in add:
                y = Ins(f's_nop {add[i] - 1}'); y.tag = 'auto'; out.append(y); total += add[i]
            out.append(x)
        P = out
    return P, total

def finalize(P, name='', verbose=True):
    P, nw = insert_waits(P)
    P, nn = insert_nops(P)
    if verbose:
        nm = sum(1 for x in P if x.kind == 'mfma')
        print(f"{name}: {len(P)} instrs, {nm} mfma, auto waits {nw}, auto nop states {nn}")
    return P

def kernel_text(name, P, vgpr=512, acc=256, sgpr=102):
    L = [".text", f".globl {name}", ".p2align 8", f".type {name},@function", f"{name}:"]
    for x in P:
        L.append(x.t if x.kind == 'label' else "  " + x.t)
    L += ['.section .rodata,"a"', ".p2align 6", f".amdhsa_kernel {name}",
          f"  .amdhsa_next_free_vgpr {vgpr}", f"  .amdhsa_next_free_sgpr {sgpr}", f"  .amdhsa_accum_offset {acc}",
          "  .amdhsa_group_segment_fixed_size 0", "  .amdhsa_kernarg_size 96", "  .amdhsa_user_sgpr_count 2",
          "  .amdhsa_user_sgpr_kernarg_segment_ptr 1", "  .amdhsa_system_sgpr_workgroup_id_x 1",
          ".end_amdhsa_kernel"]
    return L
```

```python
from common import *
def gen_k1(name, opt):
    e = Em()
    sC, sWK, sWV, sKF, sVF, sX, sXN = 4, 8, 12, 16, 20, 24, 28
    sH, sJ, sW, sT, sT2, sW4, sC8, sSo, sSc = 32, 33, 34, 35, 36, 37, 38, 39, 40
    s4k, s8k, s12k, s16k = 41, 42, 43, 44
    pX, pC, pWK, pWV, pWS = 46, 48, 52, 54, 56
    ACC1 = 128; RING = 192; TRK = 224; TRV = 232; CR = 236; DK = 240; DV = 244; VL16 = 248; VL = 249
    T0, T1, T2, T3, T4 = 250, 251, 252, 253, 254
    DC = 128; LN = 136
    e(f"s_cmp_ge_u32 s2, 256\ns_cbranch_scc1 {name}_end")
    st = opt.get('st', 0)
    if st: e.ext([stamp(0, True), stamp(1)])
    e(f"s_load_dwordx2 s[{pX}:{pX+1}], s[0:1], {KA['x']}")
    e(f"s_load_dwordx2 s[{pC}:{pC+1}], s[0:1], {KA['ckv']}")
    e(f"s_load_dwordx2 s[{pWK}:{pWK+1}], s[0:1], {KA['wuk']}")
    e(f"s_load_dwordx2 s[{pWV}:{pWV+1}], s[0:1], {KA['wuv']}")
    e(f"s_load_dwordx2 s[{pWS}:{pWS+1}], s[0:1], {KA['ws']}")
    e(f"v_lshrrev_b32 v{T0}, 6, v0\nv_and_b32 v{VL}, 63, v0\nv_readfirstlane_b32 s{sW}, v{T0}")
    e(f"s_and_b32 s{sH}, s2, 7\ns_lshl_b32 s{sH}, s{sH}, 2\ns_bfe_u32 s{sT}, s2, 0x20003\ns_add_u32 s{sH}, s{sH}, s{sT}\ns_lshr_b32 s{sJ}, s2, 5")
    e(f"s_mov_b32 s{s4k}, 4096\ns_mov_b32 s{s8k}, 8192\ns_mov_b32 s{s12k}, 12288\ns_mov_b32 s{s16k}, 16384")
    e(f"s_lshl_b32 s{sW4}, s{sW}, 12\ns_lshl_b32 s{sC8}, s{sW}, 13\ns_add_u32 s{sC8}, s{sC8}, 65536")
    L = VL
    e(f"v_lshlrev_b32 v{VL16}, 4, v{L}")
    e(f"v_lshrrev_b32 v{T0}, 4, v{L}\nv_and_b32 v{T1}, 15, v{L}\ns_lshl_b32 s{sT}, s{sW}, 4\nv_add_u32 v{T2}, s{sT}, v{T0}\nv_lshlrev_b32 v{T2}, 13, v{T2}")
    for n in range(4):
        e(f"v_lshlrev_b32 v{T3}, 1, v{T0}")
        if n >= 2: e(f"v_or_b32 v{T3}, 8, v{T3}")
        e(f"v_xor_b32 v{T3}, v{T3}, v{T1}\nv_lshl_add_u32 v{T3}, v{T3}, 4, v{T2}\nv_add_u32 v{DK+n}, {n*4*8192 - n*1024}, v{T3}")
    e(f"v_lshrrev_b32 v{T2}, 3, v{L}\nv_lshlrev_b32 v{T2}, 10, v{T2}\nv_and_b32 v{T4}, 7, v{L}")
    for n in range(8):
        if n < 2:
            e(f"v_or_b32 v{T3}, {4*n}, v{T0}\nv_xor_b32 v{T3}, v{T3}, v{T4}\nv_lshl_add_u32 v{DC+n}, v{T3}, 4, v{T2}")
            if n == 1: e(f"v_add_u32 v{DC+1}, {8192-1024}, v{DC+1}")
        else:
            p = n % 2
            e(f"v_add_u32 v{DC+n}, {(n*8192 - (n%4)*1024) - (p*8192 - p*1024)}, v{DC+p}")
    e("s_waitcnt lgkmcnt(0)")
    e(f"s_lshl_b32 s{sT}, s{sJ}, 18\ns_lshl_b32 s{sT2}, s{sW}, 16\ns_add_u32 s{sT}, s{sT}, s{sT2}")
    srd(e, sC, pC, f"s{sT}", 65536)
    e(f"s_lshl_b32 s{sT}, s{sH}, 8\ns_sub_u32 s{sT2}, {512*8192}, s{sT}")
    srd(e, sWK, pWK, f"s{sT}", f"s{sT2}")
    srd(e, sWV, pWV, f"s{sT}", f"s{sT2}")
    SLOTW = [0, 16384, 32768]; SLOTC = [0, 32768, 65536]
    VBASE = {8: 49152, 9: 32768, 10: 131072, 11: 147456, 12: 0, 13: 65536, 14: 81920, 15: 16384}
    def dma_w(s):
        if s < 8:
            g = [I(f"s_add_u32 m0, s{sW4}, {SLOTW[s%3]}"), I(f"s_mov_b32 s{sSo}, {s*64*8192}")]
            r = [I(f"buffer_load_dwordx4 v{DK+n}, s[{sWK}:{sWK+3}], s{sSo} offen offset:{n*1024} lds", tag=f"W{s}") for n in range(4)]
        else:
            j = (s - 8) % 4; gam = (s - 8) // 4
            g = [I(f"s_add_u32 m0, s{sW4}, {VBASE[s]}"), I(f"s_mov_b32 s{sSo}, {j*128*8192 + gam*128}")]
            r = [I(f"buffer_load_dwordx4 v{DV+n}, s[{sWV}:{sWV+3}], s{sSo} offen offset:{n*1024} lds", tag=f"W{s}") for n in range(4)]
        return [[x] for x in g + r]
    def dma_c(s):
        o = [I(f"s_mov_b32 s{sSc}, {s*128}")]
        for n in range(8):
            if n % 4 == 0: o.append(I(f"s_add_u32 m0, s{sC8}, {SLOTC[s%3] + (n//4)*4096}"))
            o.append(I(f"buffer_load_dwordx4 v{DC+n}, s[{sC}:{sC+3}], s{sSc} offen offset:{(n%4)*1024} lds", tag=f"C{s}"))
        return [[x] for x in o]
    flat = lambda gs: [x for g in gs for x in g]
    e.ext(flat(dma_w(0) + dma_c(0) + dma_w(1) + dma_c(1)))
    e(f"v_lshrrev_b32 v{T2}, 3, v{L}\ns_lshl_b32 s{sT}, s{sW}, 5\nv_add_u32 v{T2}, s{sT}, v{T2}\nv_lshlrev_b32 v{T2}, 13, v{T2}")
    e(f"v_and_b32 v{T1}, 1, v{T0}\nv_lshlrev_b32 v{T1}, 1, v{T1}")
    for n in range(4):
        e(f"v_or_b32 v{T3}, {4*(n&1)}, v{T1}\nv_xor_b32 v{T3}, v{T3}, v{T4}\nv_lshl_add_u32 v{T3}, v{T3}, 4, v{T2}\nv_add_u32 v{DV+n}, {n*8*8192 - n*1024}, v{T3}")
    e.ext(flat(dma_w(2) + dma_c(2) + dma_w(8)))
    e(f"s_lshl_b32 s{sT}, s2, 3\ns_lshl_b32 s{sT2}, s{sW}, 1\ns_add_u32 s{sT}, s{sT}, s{sT2}\ns_mul_i32 s{sT2}, s{sT}, 1280")
    srd(e, sX, pX, f"s{sT2}", 2560)
    e(f"s_lshr_b32 s{sT2}, s{sT}, 4\ns_mul_i32 s{sT2}, s{sT2}, 20480\ns_and_b32 s{sT}, s{sT}, 15\ns_lshl_b32 s{sT}, s{sT}, 4\ns_add_u32 s{sT2}, s{sT2}, s{sT}")
    srd(e, sXN, pWS, f"s{sT2}", 20256, XN_OFF)
    XR = LN; XF = LN + 12; LA, LB, LC, LD, LM, LS, LT = LN + 36, LN + 37, LN + 38, LN + 39, LN + 40, LN + 41, LN + 42
    e(f"v_and_b32 v{T1}, 1, v{L}\nv_lshrrev_b32 v{T2}, 1, v{L}\nv_mul_u32_u24 v{T3}, 1280, v{T1}\nv_lshl_add_u32 v{LA}, v{T2}, 4, v{T3}")
    e(f"v_lshlrev_b32 v{T3}, 4, v{T1}\nv_lshl_add_u32 v{LC}, v{T2}, 8, v{T3}")
    e(f"v_cmp_gt_u32 s[58:59], 32, v{L}\nv_mov_b32 v{T3}, 0x10000000\nv_cndmask_b32 v{LB}, v{T3}, v{LA}, s[58:59]\nv_cndmask_b32 v{LD}, v{T3}, v{LC}, s[58:59]")
    e(f"buffer_load_dwordx4 v[{XR}:{XR+3}], v{LA}, s[{sX}:{sX+3}], 0 offen")
    e(f"buffer_load_dwordx4 v[{XR+4}:{XR+7}], v{LA}, s[{sX}:{sX+3}], 0 offen offset:512")
    e(f"buffer_load_dwordx4 v[{XR+8}:{XR+11}], v{LB}, s[{sX}:{sX+3}], 0 offen offset:1024")
    e(f"s_lshl_b32 s{sT}, s{sH}, 19\ns_lshl_b32 s{sT2}, s{sJ}, 16\ns_add_u32 s{sT}, s{sT}, s{sT2}\ns_lshl_b32 s{sT2}, s{sW}, 14\ns_add_u32 s{sT}, s{sT}, s{sT2}")
    srd(e, sKF, pWS, f"s{sT}", 16384, KF_OFF)
    srd(e, sVF, pWS, f"s{sT}", 16384, VF_OFF)
    e(f"v_bfe_u32 v{T1}, v{L}, 2, 2\nv_and_b32 v{T2}, 3, v{L}\nv_lshlrev_b32 v{T2}, 3, v{T2}\nv_lshl_add_u32 v{T3}, v{T0}, 3, v{T1}")
    e(f"v_and_b32 v{T4}, 1, v{T0}\nv_lshl_add_u32 v{TRV}, v{T4}, 2, v{T1}\nv_lshl_add_u32 v{TRV+1}, v{T3}, 8, v{T2}")
    for cb in range(8):
        e(f"v_xor_b32 v{TRK+cb}, {cb}, v{TRV}\nv_lshl_add_u32 v{TRK+cb}, v{TRK+cb}, 5, v{TRV+1}")
    e(f"v_lshrrev_b32 v{T1}, 1, v{T1}\nv_lshl_add_u32 v{T1}, v{T4}, 1, v{T1}\nv_lshl_add_u32 v{T2}, v{T3}, 7, v{T2}")
    for cb in range(4):
        e(f"v_xor_b32 v{TRV+cb}, {cb}, v{T1}\nv_lshl_add_u32 v{TRV+cb}, v{TRV+cb}, 5, v{T2}")
    e(f"v_and_b32 v{T1}, 15, v{L}\nv_lshrrev_b32 v{T2}, 1, v{T1}\nv_xor_b32 v{T2}, v{T2}, v{T0}\nv_lshlrev_b32 v{T2}, 4, v{T2}\nv_lshl_add_u32 v{T2}, v{T1}, 7, v{T2}")
    e(f"v_add_u32 v{CR}, s{sC8}, v{T2}\nv_xor_b32 v{CR+1}, 64, v{CR}\nv_add_u32 v{CR+2}, 0x10000, v{CR}\nv_add_u32 v{CR+3}, 0x10000, v{CR+1}")

    cf = lambda T, kb: vr((T * 4 + kb) * 4, 4, 'a')
    ring = lambda F: RING + (F % 8) * 4
    main = []
    LEAD = opt.get('lead', 12)
    bpos = {s: 64 * s - LEAD for s in range(1, 10)}; bpos[12] = 64 * 12 - LEAD
    for F in range(256):
        s = F // 16
        for kb in range(4):
            pre = []
            if s < 8:
                kk, cb = (F % 16) // 8, F % 8; T = 2 * s + kk
                d = vr(kb * 32 + cb * 4, 4)
                m = mf(d, vr(ring(F), 4), cf(T, kb), "0" if T == 0 else d)
                if kb == 0 and cb == 0: pre.append(need(*rr('a', T * 16, 16), *rr('v', ring(F), 8)))
                elif kb == 0 and F % 2 == 0: pre.append(need(*rr('v', ring(F), 8)))
            else:
                gam = (s - 8) // 4; T = ((s - 8) % 4) * 4 + (F % 16) // 4; cb = F % 4
                d = vr((ACC1 if gam == 0 else 0) + cb * 16 + kb * 4, 4)
                m = mf(d, cf(T, kb), vr(ring(F), 4), "0" if T == 0 else d)
                if kb == 0 and F % 2 == 0: pre.append(need(*rr('v', ring(F), 8)))
            main.append([pre, m])
    for s, b in bpos.items():
        tags = [f"W{s}"] if s < 9 else ([f"W{x}" for x in (9, 10, 11)] if s == 9 else [f"W{x}" for x in (12, 13, 14, 15)])
        pre = [need(*tags)]
        if s <= 8: pre.append(I("s_waitcnt lgkmcnt(0)"))
        main[b][0] = pre + [I("s_barrier")] + main[b][0]
    def bar_of(s):
        if s in bpos: return bpos[s]
        return bpos[9] if s < 12 else bpos[12]
    wr = []
    for F in range(256):
        s = F // 16
        if s < 8:
            kk, cb = (F % 16) // 8, F % 8
            a = TRK + cb; off = SLOTW[s % 3] + kk * 8192; o2 = 1024
        else:
            kk, cb = (F % 16) // 4, F % 4
            base = VBASE[s]; a = TRV + cb if base < 65536 else (TRK + cb if base < 131072 else TRK + 4 + cb)
            off = base % 65536 + kk * 4096; o2 = 512
        lo = max(4 * (F - 8) + 3, bar_of(s) - 1 if s > 0 else -1)
        hi = 4 * (F - F % 2) - 5
        if s + 1 in bpos and s + 1 <= 8: hi = min(hi, bpos[s + 1] - 5)
        if F < 2: lo = hi = -1
        tg = max(lo, 4 * F - 18)
        wr.append(at(I(f"ds_read_b64_tr_b16 {vr(ring(F),2)}, v{a} offset:{off}"), lo, hi, tg))
        wr.append(at(I(f"ds_read_b64_tr_b16 {vr(ring(F)+2,2)}, v{a} offset:{off+o2}"), lo, hi, tg))
    lastK = wr[2 * 127 + 1][0].hi
    adj = [at(I(f"v_add_u32 v{TRK+j}, {0x10000 if j < 4 else 0x20000}, v{TRV + j % 4}"), lastK + 1, 600, 540 + 2 * j) for j in range(8)]
    cr = []
    for T in range(16):
        s, tp = T // 2, T % 2
        for kb in range(4):
            a = CR + tp + (2 if s % 3 == 2 else 0); off = (SLOTC[s % 3] % 65536) + kb * 2048
            x = I(f"ds_read_b128 {cf(T,kb)}, v{a} offset:{off}")
            use = 32 * T
            if T == 0: g = at(x, -1, -1, -1)
            else:
                g = at(x, None, use - 6, use - 30 + 4 * kb)
                if tp == 0 and kb == 0: g = at([need(f"C{s}"), x], None, use - 6, use - 30)
            cr.append(g)
    dm = []
    for s in range(1, 9):
        if s <= 5: gs = dma_w(s + 2) + dma_c(s + 2)
        elif s == 6: gs = dma_w(9) + dma_w(10) + dma_w(11)
        elif s == 7: gs = dma_w(12) + dma_w(13) + dma_w(14)
        else: gs = dma_w(15)
        gs = spread(gs, bpos[s], bpos[s] + (44 if s < 8 else 16))
        for g in gs: g[0].lo = bpos[s] - 1; g[0].hi = bpos[s] + 58
        dm += gs
    ln = []
    A = lambda t: ln.append([I(t)])
    for j in range(12):
        A(f"v_lshlrev_b32 v{XF+2*j}, 16, v{XR+j}"); A(f"v_and_b32 v{XF+2*j+1}, 0xffff0000, v{XR+j}")
    A(f"v_add_f32 v{LS}, v{XF}, v{XF+1}")
    for j in range(2, 24): A(f"v_add_f32 v{LS}, v{LS}, v{XF+j}")
    def allred(r):
        for k in (2, 4, 8): A(f"v_add_f32_dpp v{r}, v{r}, v{r} row_ror:{k} row_mask:0xf bank_mask:0xf")
        for sw in ("16", "32"):
            A(f"v_mov_b32 v{LT}, v{r}"); A(f"v_permlane{sw}_swap_b32 v{LT}, v{r}"); A(f"v_add_f32 v{r}, v{r}, v{LT}")
    allred(LS)
    A(f"v_mul_f32 v{LM}, {fb(1/640)}, v{LS}")
    A(f"v_cndmask_b32 v{LT}, 0, v{LM}, s[58:59]")
    for j in range(24): A(f"v_sub_f32 v{XF+j}, v{XF+j}, v{LM if j < 16 else LT}")
    A(f"v_mul_f32 v{LS}, v{XF}, v{XF}")
    for j in range(1, 24): A(f"v_fmac_f32 v{LS}, v{XF+j}, v{XF+j}")
    allred(LS)
    A(f"v_mov_b32 v{LT}, {fb(1e-5)}"); A(f"v_fmac_f32 v{LT}, {fb(1/640)}, v{LS}"); A(f"v_rsq_f32 v{LT}, v{LT}"); A(f"v_mul_f32 v{LT}, {fb(C0)}, v{LT}")
    for j in range(24): A(f"v_mul_f32 v{XF+j}, v{XF+j}, v{LT}")
    for j in range(12): A(f"v_cvt_pk_bf16_f32 v{XR+j}, v{XF+2*j}, v{XF+2*j+1}")
    A(f"buffer_store_dwordx4 v[{XR}:{XR+3}], v{LC}, s[{sXN}:{sXN+3}], 0 offen {STF}")
    A(f"buffer_store_dwordx4 v[{XR+4}:{XR+7}], v{LC}, s[{sXN}:{sXN+3}], s{s8k} offen {STF}")
    A(f"buffer_store_dwordx4 v[{XR+8}:{XR+11}], v{LD}, s[{sXN}:{sXN+3}], s{s16k} offen {STF}")
    spread(ln, 130, 470)
    for g in ln: g[0].lo = 128; g[0].hi = 500
    so = ["0", f"s{s4k}", f"s{s8k}", f"s{s12k}"]
    def epi_k():
        o = []
        for kb in range(4):
            for T in range(4):
                b = kb * 32 + 8 * T
                o += [[x] for x in pack4(b)]
                o.append([I(f"buffer_store_dwordx4 {vr(b,4)}, v{VL16}, s[{sKF}:{sKF+3}], {so[kb]} offen offset:{T*1024} {STF}")])
        return o
    def epi_v(gam):
        o = []
        for cb in range(4):
            for s2 in range(2):
                b = (ACC1 if gam == 0 else 0) + cb * 16 + 8 * s2
                o += [[x] for x in pack4(b)]
                o.append([I(f"buffer_store_dwordx4 {vr(b,4)}, v{VL16}, s[{sVF}:{sVF+3}], {so[2*s2+gam]} offen offset:{cb*1024} {STF}")])
        return o
    ek = spread(epi_k(), 520, 750)
    for g in ek: g[0].lo = 518; g[0].hi = 762
    ev = spread(epi_v(0), 776, 960)
    for g in ev: g[0].lo = 774; g[0].hi = 1010
    el = epi_v(1)
    if st:
        for k, m in enumerate((64, 128, 256, 512, 768)): main[m][0].append(stamp(3 + k))
    e.ext([need("W0", "C0"), I("s_barrier")])
    if st: e.ext([stamp(2)])
    e.ext(schedule(main, [wr, cr, dm, adj, ln, ek + ev], name=name, verbose=True))
    e.ext(flat(el))
    if st:
        e.ext([stamp(8), I("s_waitcnt vmcnt(0)"), stamp(9), stamp(10, True)])
        stamp_store(e, 11, 0, pWS, name=sW)
    e(f"{name}_end:\ns_endpgm")
    return finalize(e.P, name)
```

```python
import sys, os
sys.path.insert(0, os.path.dirname(__file__))
from common import *
import k1
def build(out, which=("k1",), opt=None):
    opt = opt or {}
    hdr = []; body = ['.amdgcn_target "amdgcn-amd-amdhsa--gfx950"']
    for k in which:
        nm = {"k1": "kvproj_kernel", "k2": "attn_kernel", "k3": "outproj_kernel"}[k]
        mod = __import__(k)
        P = getattr(mod, "gen_" + k)(nm, opt)
        hdr.append(f"; @launch kernel={nm} grid=(256,1,1) block=(256,1,1) lds={opt.get('lds_'+k, 163840)}")
        body += kernel_text(nm, P)
    open(out, "w").write("\n".join(hdr + body) + "\n")
if __name__ == "__main__":
    out = sys.argv[1]; which = sys.argv[2].split(",")
    opt = dict((a.split("=")[0], int(a.split("=")[1])) for a in sys.argv[3:])
    build(out, which, opt)
```

```python
import re

REG = re.compile(r'^(-|\|)?([vas])(\d+)\|?$')
RNG = re.compile(r'^-?([vas])\[(\d+):(\d+)\]$')

def regs_of(op):
    op = op.strip()
    m = RNG.match(op)
    if m: return [f"{m.group(1)}{i}" for i in range(int(m.group(2)), int(m.group(3)) + 1)]
    m = REG.match(op)
    if m: return [f"{m.group(2)}{m.group(3)}"]
    if op.startswith('abs(') or op.startswith('-abs('):
        return regs_of(op[op.index('(') + 1:-1])
    if op in ('vcc', 'm0', 'exec', 'scc'): return [op]
    if op in ('vcc_lo', 'vcc_hi'): return ['vcc']
    if op in ('exec_lo', 'exec_hi'): return ['exec']
    return []

TRANS = ('v_exp_f32', 'v_log_f32', 'v_rcp_f32', 'v_rsq_f32', 'v_sqrt_f32', 'v_sin_f32', 'v_cos_f32')

class Ins:
    __slots__ = ('t', 'kind', 'op', 'rd', 'wr', 'cost', 'tag', 'need', 'lo', 'hi', 'tgt', 'ops', 'srcc', 'ab', 'dpp', 'vm', 'lg', 'cover', 'early', 'deps')
    def __init__(self, t, tag=None, need=None):
        self.t = t.strip(); self.tag = tag; self.need = need
        self.lo = None; self.hi = None; self.tgt = None; self.srcc = []; self.ab = []; self.dpp = False
        self.vm = None; self.lg = None; self.cover = 0; self.early = 0; self.deps = []
        self.parse()
    def __repr__(self): return self.t
    def parse(self):
        t = self.t
        if t.endswith(':'):
            self.kind = 'label'; self.op = ''; self.rd = []; self.wr = []; self.cost = 0; self.ops = []; return
        if t.startswith('.') or t.startswith(';'):
            self.kind = 'dir'; self.op = ''; self.rd = []; self.wr = []; self.cost = 0; self.ops = []; return
        if t.startswith('@need'):
            self.kind = 'need'; self.op = ''; self.rd = []; self.wr = []; self.cost = 1; self.ops = []; return
        sp = t.split(None, 1)
        op = sp[0]; rest = sp[1] if len(sp) > 1 else ''
        base = re.sub(r'_(e32|e64|dpp|sdwa)$', '', op)
        self.op = base
        ops = []; cur = ''; d = 0
        for ch in rest:
            if ch in '[(': d += 1
            if ch in '])': d -= 1
            if ch == ',' and d == 0: ops.append(cur.strip()); cur = ''
            else: cur += ch
        if cur.strip(): ops.append(cur.strip())
        mods = ''
        if ops:
            last = ops[-1].split(None, 1)
            ops[-1] = last[0]; mods = last[1] if len(last) > 1 else ''
        self.ops = ops
        R = [regs_of(o) for o in ops]
        allr = [r for x in R for r in x]
        rd = []; wr = []; cost = 1
        if base.startswith('v_mfma'):
            kind = 'mfma'; wr = R[0]; rd = R[1] + R[2] + R[3]; self.srcc = R[3]; self.ab = R[1] + R[2]; cost = 2
        elif base.startswith('ds_read') :
            kind = 'ds_r'; wr = R[0]; rd = R[1]
        elif base.startswith('ds_write'):
            kind = 'ds_w'; rd = allr
        elif base.startswith('ds_bpermute') or base.startswith('ds_swizzle'):
            kind = 'ds_r'; wr = R[0]; rd = [r for x in R[1:] for r in x]
        elif base.startswith('buffer_load') or base.startswith('global_load'):
            if re.search(r'\blds\b', mods): kind = 'vdma'; rd = allr + ['m0']
            else: kind = 'vload'; wr = R[0]; rd = [r for x in R[1:] for r in x]
            cost = 2
        elif base.startswith('buffer_store') or base.startswith('global_store'):
            kind = 'vstore'; rd = allr; cost = 2
        elif base.startswith('buffer_atomic') or base.startswith('global_atomic'):
            kind = 'vstore'; rd = allr; cost = 2
            if re.search(r'\bsc0\b', mods): kind = 'vload'; wr = R[0]
        elif base in ('buffer_inv', 'buffer_wbl2'):
            kind = 'vstore'; cost = 2
        elif base.startswith('s_load') or base in ('s_memtime', 's_memrealtime'):
            kind = 'smem'; wr = R[0]; rd = [r for x in R[1:] for r in x]
        elif base == 's_waitcnt':
            kind = 'wait'
            m = re.search(r'vmcnt\((\d+)\)', t); self.vm = int(m.group(1)) if m else None
            m = re.search(r'lgkmcnt\((\d+)\)', t); self.lg = int(m.group(1)) if m else None
        elif base == 's_barrier': kind = 'bar'
        elif base == 's_nop': kind = 'nop'; cost = int(ops[0], 0) + 1
        elif base in ('s_endpgm',): kind = 'end'
        elif base == 's_branch' or base.startswith('s_cbranch'):
            kind = 'branch'
            if 'scc' in base: rd = ['scc']
            if 'vcc' in base: rd = ['vcc']
            if 'exec' in base: rd = ['exec']
        elif base in ('s_setprio', 's_sleep'): kind = 'salu'
        elif base.startswith('s_cmp'):
            kind = 'salu'; rd = allr; wr = ['scc']
        elif base.startswith('s_'):
            kind = 'salu'; wr = list(R[0]); rd = [r for x in R[1:] for r in x]
            if base.startswith(('s_add', 's_sub', 's_and', 's_or', 's_xor', 's_lshl', 's_lshr', 's_ashr', 's_min', 's_max', 's_not', 's_bfe', 's_andn2', 's_orn2')): wr.append('scc')
            if base.startswith(('s_addc', 's_subb', 's_cselect', 's_cmov')): rd.append('scc')
            if base.startswith(('s_addk', 's_mulk', 's_cmov', 's_bitset')): rd += R[0]
            if 'saveexec' in base: rd.append('exec'); wr.append('exec')
        elif base.startswith('v_'):
            kind = 'trans' if base in TRANS else 'valu'
            if kind == 'trans': cost = 2
            if base.startswith('v_cmp'):
                wr = R[0]; rd = [r for x in R[1:] for r in x]
            elif base.startswith('v_permlane') and 'swap' in base:
                wr = R[0] + R[1]; rd = R[0] + R[1]
            elif base in ('v_add_co_u32', 'v_sub_co_u32', 'v_addc_co_u32'):
                wr = R[0] + R[1]; rd = [r for x in R[2:] for r in x]
            else:
                wr = R[0]; rd = [r for x in R[1:] for r in x]
                if base.startswith(('v_fmac', 'v_writelane', 'v_dot2c', 'v_pk_fmac')): rd = rd + R[0]
                if base == 'v_cndmask_b32' and len(ops) == 3: rd.append('vcc')
            if op.endswith('_dpp') or 'row_' in mods or 'quad_perm' in mods:
                self.dpp = True; rd = rd + R[0]
            if base.startswith('v_pk_'): cost = 2
        else:
            raise ValueError('cannot parse: ' + t)
        self.kind = kind; self.rd = rd; self.wr = wr; self.cost = cost

def I(t, **k): return Ins(t, **k)
def need(*res, cover=0):
    x = Ins('@need', need=list(res)); x.cover = cover; return x
def vr(b, n, p='v'): return f"{p}{b}" if n == 1 else f"{p}[{b}:{b + n - 1}]"
def rr(p, b, n): return [f"{p}{i}" for i in range(b, b + n)]

MEM = ('ds_r', 'ds_w', 'vload', 'vdma', 'vstore')

def schedule(main, streams, budget=2, name='', verbose=False, thr=2):
    M = len(main)
    S = [[[g] if isinstance(g, Ins) else g for g in st] for st in streams]
    for gs in S:
        h = M - 1
        for g in reversed(gs):
            x = g[0]
            if x.hi is None: x.hi = M - 1
            x.hi = min(x.hi, h); h = x.hi
    for it in range(4):
        for gs in S:
            h = M - 1
            for g in reversed(gs):
                x = g[0]; x.hi = min(x.hi, h); h = x.hi
                for d in x.deps: d.hi = min(d.hi if d.hi is not None else M - 1, x.hi)
    for gs in S:
        l = -1
        for g in gs:
            x = g[0]
            if x.lo is None: x.lo = -1
            x.lo = max(x.lo, l); l = x.lo
            if x.tgt is None: x.tgt = x.lo
            x.tgt = max(x.lo, min(x.tgt, x.hi))
            if x.lo > x.hi: raise ValueError(f"{name}: lo>hi for {x} lo={x.lo} hi={x.hi}")
    pos = [0] * len(S)
    out = []; cyc = 0; done = {}
    gcost = lambda g: sum(x.cost for x in g)
    ismem = lambda g: any(x.kind in MEM for x in g)
    for gap in range(-1, M):
        if gap >= 0: out.append(main[gap][1])
        nxt_pre = main[gap + 1][0] if gap + 1 < M else []
        room = budget - sum(x.cost for x in nxt_pre) if gap >= 0 else 0
        placed = []; nmem = 0
        while True:
            best = None
            for si, gs in enumerate(S):
                if pos[si] >= len(gs): continue
                g = gs[pos[si]]; x = g[0]
                if x.lo > gap or any(id(d) not in done for d in x.deps): continue
                if x.hi > gap and any(done[id(d)] == gap for d in x.deps): continue
                lag = gap - x.tgt; c = gcost(g) + (1 if ismem(g) and nmem else 0)
                if x.hi <= gap: key = (0, 0, si)
                elif gap < 0: continue
                elif c <= room and lag >= 0: key = (1, -lag, si)
                elif lag > thr and room >= 0 and c <= room + 1 and not (ismem(g) and nmem): key = (2, -lag, si)
                elif lag > 3 * thr and room == budget: key = (2, -lag, si)
                elif c <= room and lag >= -x.early and not (ismem(g) and nmem): key = (3, -lag, si)
                else: continue
                if best is None or key < best[0]: best = (key, si, g, c)
            if best is None: break
            _, si, g, c = best
            pos[si] += 1; room -= c
            if ismem(g): nmem += 1
            placed.append((si, g))
            for x in g: done[id(x)] = gap
        order = []; rest = []; seen = set()
        for si, g in placed:
            if ismem(g) and si not in seen and not rest_conflict(rest, g): order.append(g)
            else: rest.append(g); seen.add(si)
        for g in order + rest: out.extend(g)
        cyc += max(4 * (budget + 2), 4 * (budget + 2 - room)) if gap >= 0 else -4 * room
        out.extend(nxt_pre)
    for si, gs in enumerate(S):
        assert pos[si] == len(gs), (name, si, pos[si], len(gs), gs[pos[si]])
    if verbose: print(f"  sched {name}: mfma={M} ideal={16*M} est={cyc}")
    return out

def rest_conflict(rest, g):
    rd = set(r for x in g for r in x.rd); wr = set(r for x in g for r in x.wr)
    for h in rest:
        for x in h:
            if set(x.wr) & (rd | wr) or set(x.rd) & wr: return True
    return False

def spread(groups, lo, hi):
    gs = [[g] if isinstance(g, Ins) else g for g in groups]
    tot = sum(sum(x.cost for x in g) for g in gs) or 1
    acc = 0
    for g in gs:
        g[0].tgt = int(lo + (hi - lo) * acc / tot + 1e-9)
        acc += sum(x.cost for x in g)
    return gs

def build_cfg(P):
    labels = {x.t[:-1]: i for i, x in enumerate(P) if x.kind == 'label'}
    succ = [[] for _ in P]
    for i, x in enumerate(P):
        if x.kind == 'end': continue
        if x.kind == 'branch':
            succ[i].append(labels[x.ops[0]])
            if x.op != 's_branch' and i + 1 < len(P): succ[i].append(i + 1)
        elif i + 1 < len(P): succ[i].append(i + 1)
    pred = [[] for _ in P]
    for i, s in enumerate(succ):
        for j in s: pred[j].append(i)
    return succ, pred

def insert_waits(P):
    succ, pred = build_cfg(P)
    n = len(P)
    W = [[None, None] for _ in P]
    IN = [None] * n
    IN[0] = ({}, {})
    work = [0]
    def step(i, st):
        vm, lg = dict(st[0]), dict(st[1])
        x = P[i]
        touch = set(x.rd) | set(x.wr)
        if x.kind == 'need': touch = set(x.need)
        def req(d):
            k = [d[r] for r in touch if r in d]
            return min(k) if k else None
        a = req(vm); b = req(lg)
        if x.kind in ('vload',):
            k = [vm[r] for r in x.rd if r in vm]; a = min(k) if k else None
        if x.kind == 'ds_r':
            k = [lg[r] for r in x.rd if r in lg]; b = min(k) if k else None
        if 'SMEM' in lg and b is not None: b = 0
        if a is not None: a = min(a, 63); W[i][0] = a if W[i][0] is None else min(W[i][0], a)
        if b is not None: b = min(b, 15); W[i][1] = b if W[i][1] is None else min(W[i][1], b)
        a, b = W[i]
        if x.kind == 'wait':
            if x.vm is not None: a = x.vm if a is None else min(a, x.vm)
            if x.lg is not None: b = x.lg if b is None else min(b, x.lg)
        if a is not None: vm = {r: k for r, k in vm.items() if k < a}
        if b is not None:
            if b == 0: lg = {}
            elif 'SMEM' not in lg: lg = {r: k for r, k in lg.items() if k < b}
        if x.kind in ('vload', 'vdma', 'vstore'):
            vm = {r: k + 1 for r, k in vm.items()}
            for r in x.wr: vm[r] = 0
            if x.tag: vm[x.tag] = 0
        elif x.kind in ('ds_r', 'ds_w'):
            lg = {r: k + 1 for r, k in lg.items()}
            for r in x.wr: lg[r] = 0
            if x.tag: lg[x.tag] = 0
        elif x.kind == 'smem':
            lg['SMEM'] = 0
            for r in x.wr: lg[r] = 0
        return vm, lg
    def join(a, b):
        ch = False; res = []
        for da, db in zip(a, b):
            d = dict(da)
            for r, k in db.items():
                if r not in d or k < d[r]: d[r] = k; ch = True
            res.append(d)
        return tuple(res), ch
    for it in range(50):
        IN = [None] * n; IN[0] = ({}, {})
        Wold = [list(w) for w in W]
        work = [0]; cnt = 0
        while work:
            i = work.pop(); cnt += 1
            while True:
                o = step(i, IN[i])
                nx = None
                for j in succ[i]:
                    if IN[j] is None: IN[j] = o; ch = True
                    else: IN[j], ch = join(IN[j], o)
                    if ch:
                        if nx is None: nx = j
                        else: work.append(j)
                if nx is None: break
                i = nx
        if W == Wold: break
    out = []; nins = 0
    for i, x in enumerate(P):
        a, b = W[i]
        if a is not None or b is not None:
            if x.kind == 'wait':
                a = x.vm if a is None else (a if x.vm is None else min(a, x.vm))
                b = x.lg if b is None else (b if x.lg is None else min(b, x.lg))
            s = 's_waitcnt' + (f' vmcnt({a})' if a is not None else '') + (f' lgkmcnt({b})' if b is not None else '')
            w = Ins(s)
            if x.kind not in ('need', 'wait'): nins += 1; w.tag = 'auto'
            out.append(w)
            if x.kind == 'wait': continue
        if x.kind != 'need': out.append(x)
    return out, nins

def states(x):
    if x.kind in ('label', 'dir', 'need'): return 0
    if x.kind == 'nop': return x.cost
    return 1

def hazard_need(p, x):
    n = 0
    pw = set(p.wr); xr = set(x.rd); xw = set(x.wr)
    pv = p.kind in ('valu', 'trans'); xv = x.kind in ('valu', 'trans')
    xmem = x.kind in MEM
    if p.kind == 'mfma':
        big = '32x32' in p.op
        if x.kind == 'mfma':
            if pw & set(x.ab): n = max(n, 12 if big else 8)
            if pw & set(x.srcc) and not (list(p.wr) == list(x.srcc) and p.op == x.op): n = max(n, 10 if big else 6)
        elif xv or xmem:
            if pw & (xr | xw): n = max(n, 12 if big else 8)
        if xv and set(p.srcc) & xw: n = max(n, 7 if big else 3)
    if pv:
        vw = set(r for r in pw if r[0] in 'va' and r != 'vcc')
        sw = pw - vw
        if x.kind == 'mfma' and vw & xr: n = max(n, 2)
        if x.kind == 'mfma' and 'exec' in pw: n = max(n, 4)
        if p.kind == 'trans' and x.kind == 'valu' and vw & xr: n = max(n, 1)
        if xv and x.op in ('v_readlane_b32', 'v_readfirstlane_b32') and vw & xr: n = max(n, 1)
        if xv and (x.dpp or x.op.startswith('v_permlane')) and vw & xr: n = max(n, 2)
        if xv and sw & xr: n = max(n, 4 if x.op in ('v_readlane_b32', 'v_writelane_b32') else 2)
        if x.kind in ('vload', 'vdma', 'vstore') and sw & xr: n = max(n, 5)
        if x.kind == 'salu' and sw & xr: n = max(n, 1)
    if p.kind == 'salu' and 'm0' in pw and x.kind == 'vdma': n = max(n, 1)
    if p.kind == 'vstore' and ('x4' in p.op or 'x3' in p.op):
        data = set(regs_of(p.ops[0] if p.op.startswith('buffer') else p.ops[1]))
        if data & xw: n = max(n, 2 if xv else 1)
    return n

def insert_nops(P):
    total = 0
    for it in range(4):
        succ, pred = build_cfg(P)
        add = {}
        for i, x in enumerate(P):
            if x.kind in ('label', 'dir', 'nop', 'wait', 'bar', 'branch', 'end'): continue
            worst = 0
            stack = [(j, 0) for j in pred[i]]; seen = {}
            while stack:
                j, d = stack.pop()
                if d >= 12 or seen.get(j, 99) <= d: continue
                seen[j] = d
                p = P[j]
                h = hazard_need(p, x)
                if h - d > worst: worst = h - d
                d2 = d + states(p) + add.get(j, 0)
                for k in pred[j]: stack.append((k, d2))
            if worst > 0: add[i] = worst
        if not add: break
        out = []
        for i, x in enumerate(P):
            if i in add:
                y = Ins(f's_nop {add[i] - 1}'); y.tag = 'auto'; out.append(y); total += add[i]
            out.append(x)
        P = out
    return P, total

def finalize(P, name='', verbose=True):
    P, nw = insert_waits(P)
    P, nn = insert_nops(P)
    if verbose:
        nm = sum(1 for x in P if x.kind == 'mfma')
        print(f"{name}: {len(P)} instrs, {nm} mfma, auto waits {nw}, auto nop states {nn}")
    return P

def kernel_text(name, P, vgpr=512, acc=256, sgpr=102):
    L = [".text", f".globl {name}", ".p2align 8", f".type {name},@function", f"{name}:"]
    for x in P:
        L.append(x.t if x.kind == 'label' else "  " + x.t)
    L += ['.section .rodata,"a"', ".p2align 6", f".amdhsa_kernel {name}",
          f"  .amdhsa_next_free_vgpr {vgpr}", f"  .amdhsa_next_free_sgpr {sgpr}", f"  .amdhsa_accum_offset {acc}",
          "  .amdhsa_group_segment_fixed_size 0", "  .amdhsa_kernarg_size 96", "  .amdhsa_user_sgpr_count 2",
          "  .amdhsa_user_sgpr_kernarg_segment_ptr 1", "  .amdhsa_system_sgpr_workgroup_id_x 1",
          ".end_amdhsa_kernel"]
    return L
```

```python
from common import *
def gen_k1(name, opt):
    e = Em()
    sC, sWK, sWV, sKF, sVF, sX, sXN = 4, 8, 12, 16, 20, 24, 28
    sH, sJ, sW, sT, sT2, sW4, sC8, sSo, sSc = 32, 33, 34, 35, 36, 37, 38, 39, 40
    s4k, s8k, s12k, s16k = 41, 42, 43, 44
    pX, pC, pWK, pWV, pWS = 46, 48, 52, 54, 56
    ACC1 = 128; RING = 192; TRK = 224; TRV = 232; CR = 236; DK = 240; DV = 244; VL16 = 248; VL = 249
    T0, T1, T2, T3, T4 = 250, 251, 252, 253, 254
    DC = 128; LN = 136
    e(f"s_cmp_ge_u32 s2, 256\ns_cbranch_scc1 {name}_end")
    st = opt.get('st', 0)
    if st: e.ext([stamp(0, True), stamp(1)])
    e(f"s_load_dwordx2 s[{pX}:{pX+1}], s[0:1], {KA['x']}")
    e(f"s_load_dwordx2 s[{pC}:{pC+1}], s[0:1], {KA['ckv']}")
    e(f"s_load_dwordx2 s[{pWK}:{pWK+1}], s[0:1], {KA['wuk']}")
    e(f"s_load_dwordx2 s[{pWV}:{pWV+1}], s[0:1], {KA['wuv']}")
    e(f"s_load_dwordx2 s[{pWS}:{pWS+1}], s[0:1], {KA['ws']}")
    e(f"v_lshrrev_b32 v{T0}, 6, v0\nv_and_b32 v{VL}, 63, v0\nv_readfirstlane_b32 s{sW}, v{T0}")
    e(f"s_and_b32 s{sH}, s2, 7\ns_lshl_b32 s{sH}, s{sH}, 2\ns_bfe_u32 s{sT}, s2, 0x20003\ns_add_u32 s{sH}, s{sH}, s{sT}\ns_lshr_b32 s{sJ}, s2, 5")
    e(f"s_mov_b32 s{s4k}, 4096\ns_mov_b32 s{s8k}, 8192\ns_mov_b32 s{s12k}, 12288\ns_mov_b32 s{s16k}, 16384")
    e(f"s_lshl_b32 s{sW4}, s{sW}, 12\ns_lshl_b32 s{sC8}, s{sW}, 13\ns_add_u32 s{sC8}, s{sC8}, 65536")
    L = VL
    e(f"v_lshlrev_b32 v{VL16}, 4, v{L}")
    e(f"v_lshrrev_b32 v{T0}, 4, v{L}\nv_and_b32 v{T1}, 15, v{L}\ns_lshl_b32 s{sT}, s{sW}, 4\nv_add_u32 v{T2}, s{sT}, v{T0}\nv_lshlrev_b32 v{T2}, 13, v{T2}")
    for n in range(4):
        e(f"v_lshlrev_b32 v{T3}, 1, v{T0}")
        if n >= 2: e(f"v_or_b32 v{T3}, 8, v{T3}")
        e(f"v_xor_b32 v{T3}, v{T3}, v{T1}\nv_lshl_add_u32 v{T3}, v{T3}, 4, v{T2}\nv_add_u32 v{DK+n}, {n*4*8192 - n*1024}, v{T3}")
    e(f"v_lshrrev_b32 v{T2}, 3, v{L}\nv_lshlrev_b32 v{T2}, 10, v{T2}\nv_and_b32 v{T4}, 7, v{L}")
    for n in range(8):
        if n < 2:
            e(f"v_or_b32 v{T3}, {4*n}, v{T0}\nv_xor_b32 v{T3}, v{T3}, v{T4}\nv_lshl_add_u32 v{DC+n}, v{T3}, 4, v{T2}")
            if n == 1: e(f"v_add_u32 v{DC+1}, {8192-1024}, v{DC+1}")
        else:
            p = n % 2
            e(f"v_add_u32 v{DC+n}, {(n*8192 - (n%4)*1024) - (p*8192 - p*1024)}, v{DC+p}")
    e("s_waitcnt lgkmcnt(0)")
    e(f"s_lshl_b32 s{sT}, s{sJ}, 18\ns_lshl_b32 s{sT2}, s{sW}, 16\ns_add_u32 s{sT}, s{sT}, s{sT2}")
    srd(e, sC, pC, f"s{sT}", 65536)
    e(f"s_lshl_b32 s{sT}, s{sH}, 8\ns_sub_u32 s{sT2}, {512*8192}, s{sT}")
    srd(e, sWK, pWK, f"s{sT}", f"s{sT2}")
    srd(e, sWV, pWV, f"s{sT}", f"s{sT2}")
    SLOTW = [0, 16384, 32768]; SLOTC = [0, 32768, 65536]
    VBASE = {8: 49152, 9: 32768, 10: 131072, 11: 147456, 12: 0, 13: 65536, 14: 81920, 15: 16384}
    def dma_w(s):
        if s < 8:
            g = [I(f"s_add_u32 m0, s{sW4}, {SLOTW[s%3]}"), I(f"s_mov_b32 s{sSo}, {s*64*8192}")]
            r = [I(f"buffer_load_dwordx4 v{DK+n}, s[{sWK}:{sWK+3}], s{sSo} offen offset:{n*1024} lds", tag=f"W{s}") for n in range(4)]
        else:
            j = (s - 8) % 4; gam = (s - 8) // 4
            g = [I(f"s_add_u32 m0, s{sW4}, {VBASE[s]}"), I(f"s_mov_b32 s{sSo}, {j*128*8192 + gam*128}")]
            r = [I(f"buffer_load_dwordx4 v{DV+n}, s[{sWV}:{sWV+3}], s{sSo} offen offset:{n*1024} lds", tag=f"W{s}") for n in range(4)]
        return [[x] for x in g + r]
    def dma_c(s):
        o = [I(f"s_mov_b32 s{sSc}, {s*128}")]
        for n in range(8):
            if n % 4 == 0: o.append(I(f"s_add_u32 m0, s{sC8}, {SLOTC[s%3] + (n//4)*4096}"))
            o.append(I(f"buffer_load_dwordx4 v{DC+n}, s[{sC}:{sC+3}], s{sSc} offen offset:{(n%4)*1024} lds", tag=f"C{s}"))
        return [[x] for x in o]
    flat = lambda gs: [x for g in gs for x in g]
    e.ext(flat(dma_w(0) + dma_c(0) + dma_w(1) + dma_c(1)))
    e(f"v_lshrrev_b32 v{T2}, 3, v{L}\ns_lshl_b32 s{sT}, s{sW}, 5\nv_add_u32 v{T2}, s{sT}, v{T2}\nv_lshlrev_b32 v{T2}, 13, v{T2}")
    e(f"v_and_b32 v{T1}, 1, v{T0}\nv_lshlrev_b32 v{T1}, 1, v{T1}")
    for n in range(4):
        e(f"v_or_b32 v{T3}, {4*(n&1)}, v{T1}\nv_xor_b32 v{T3}, v{T3}, v{T4}\nv_lshl_add_u32 v{T3}, v{T3}, 4, v{T2}\nv_add_u32 v{DV+n}, {n*8*8192 - n*1024}, v{T3}")
    e.ext(flat(dma_w(2) + dma_c(2) + dma_w(8)))
    e(f"s_lshl_b32 s{sT}, s2, 3\ns_lshl_b32 s{sT2}, s{sW}, 1\ns_add_u32 s{sT}, s{sT}, s{sT2}\ns_mul_i32 s{sT2}, s{sT}, 1280")
    srd(e, sX, pX, f"s{sT2}", 2560)
    e(f"s_lshr_b32 s{sT2}, s{sT}, 4\ns_mul_i32 s{sT2}, s{sT2}, 20480\ns_and_b32 s{sT}, s{sT}, 15\ns_lshl_b32 s{sT}, s{sT}, 4\ns_add_u32 s{sT2}, s{sT2}, s{sT}")
    srd(e, sXN, pWS, f"s{sT2}", 20256, XN_OFF)
    XR = LN; XF = LN + 12; LA, LB, LC, LD, LM, LS, LT = LN + 36, LN + 37, LN + 38, LN + 39, LN + 40, LN + 41, LN + 42
    e(f"v_and_b32 v{T1}, 1, v{L}\nv_lshrrev_b32 v{T2}, 1, v{L}\nv_mul_u32_u24 v{T3}, 1280, v{T1}\nv_lshl_add_u32 v{LA}, v{T2}, 4, v{T3}")
    e(f"v_lshlrev_b32 v{T3}, 4, v{T1}\nv_lshl_add_u32 v{LC}, v{T2}, 8, v{T3}")
    e(f"v_cmp_gt_u32 s[58:59], 32, v{L}\nv_mov_b32 v{T3}, 0x10000000\nv_cndmask_b32 v{LB}, v{T3}, v{LA}, s[58:59]\nv_cndmask_b32 v{LD}, v{T3}, v{LC}, s[58:59]")
    e(f"buffer_load_dwordx4 v[{XR}:{XR+3}], v{LA}, s[{sX}:{sX+3}], 0 offen")
    e(f"buffer_load_dwordx4 v[{XR+4}:{XR+7}], v{LA}, s[{sX}:{sX+3}], 0 offen offset:512")
    e(f"buffer_load_dwordx4 v[{XR+8}:{XR+11}], v{LB}, s[{sX}:{sX+3}], 0 offen offset:1024")
    e(f"s_lshl_b32 s{sT}, s{sH}, 19\ns_lshl_b32 s{sT2}, s{sJ}, 16\ns_add_u32 s{sT}, s{sT}, s{sT2}\ns_lshl_b32 s{sT2}, s{sW}, 14\ns_add_u32 s{sT}, s{sT}, s{sT2}")
    srd(e, sKF, pWS, f"s{sT}", 16384, KF_OFF)
    srd(e, sVF, pWS, f"s{sT}", 16384, VF_OFF)
    e(f"v_bfe_u32 v{T1}, v{L}, 2, 2\nv_and_b32 v{T2}, 3, v{L}\nv_lshlrev_b32 v{T2}, 3, v{T2}\nv_lshl_add_u32 v{T3}, v{T0}, 3, v{T1}")
    e(f"v_and_b32 v{T4}, 1, v{T0}\nv_lshl_add_u32 v{TRV}, v{T4}, 2, v{T1}\nv_lshl_add_u32 v{TRV+1}, v{T3}, 8, v{T2}")
    for cb in range(8):
        e(f"v_xor_b32 v{TRK+cb}, {cb}, v{TRV}\nv_lshl_add_u32 v{TRK+cb}, v{TRK+cb}, 5, v{TRV+1}")
    e(f"v_lshrrev_b32 v{T1}, 1, v{T1}\nv_lshl_add_u32 v{T1}, v{T4}, 1, v{T1}\nv_lshl_add_u32 v{T2}, v{T3}, 7, v{T2}")
    for cb in range(4):
        e(f"v_xor_b32 v{TRV+cb}, {cb}, v{T1}\nv_lshl_add_u32 v{TRV+cb}, v{TRV+cb}, 5, v{T2}")
    e(f"v_and_b32 v{T1}, 15, v{L}\nv_lshrrev_b32 v{T2}, 1, v{T1}\nv_xor_b32 v{T2}, v{T2}, v{T0}\nv_lshlrev_b32 v{T2}, 4, v{T2}\nv_lshl_add_u32 v{T2}, v{T1}, 7, v{T2}")
    e(f"v_add_u32 v{CR}, s{sC8}, v{T2}\nv_xor_b32 v{CR+1}, 64, v{CR}\nv_add_u32 v{CR+2}, 0x10000, v{CR}\nv_add_u32 v{CR+3}, 0x10000, v{CR+1}")

    cf = lambda T, kb: vr((T * 4 + kb) * 4, 4, 'a')
    ring = lambda F: RING + (F % 8) * 4
    main = []
    LEAD = opt.get('lead', 12)
    bpos = {s: 64 * s - LEAD for s in range(1, 10)}; bpos[12] = 64 * 12 - LEAD
    for F in range(256):
        s = F // 16
        for kb in range(4):
            pre = []
            if s < 8:
                kk, cb = (F % 16) // 8, F % 8; T = 2 * s + kk
                d = vr(kb * 32 + cb * 4, 4)
                m = mf(d, vr(ring(F), 4), cf(T, kb), "0" if T == 0 else d)
                if kb == 0 and cb == 0: pre.append(need(*rr('a', T * 16, 16), *rr('v', ring(F), 8)))
                elif kb == 0 and F % 2 == 0: pre.append(need(*rr('v', ring(F), 8)))
            else:
                gam = (s - 8) // 4; T = ((s - 8) % 4) * 4 + (F % 16) // 4; cb = F % 4
                d = vr((ACC1 if gam == 0 else 0) + cb * 16 + kb * 4, 4)
                m = mf(d, cf(T, kb), vr(ring(F), 4), "0" if T == 0 else d)
                if kb == 0 and F % 2 == 0: pre.append(need(*rr('v', ring(F), 8)))
            main.append([pre, m])
    for s, b in bpos.items():
        tags = [f"W{s}"] if s < 9 else ([f"W{x}" for x in (9, 10, 11)] if s == 9 else [f"W{x}" for x in (12, 13, 14, 15)])
        pre = [need(*tags)]
        if s <= 8: pre.append(I("s_waitcnt lgkmcnt(0)"))
        if opt.get('k1nolg'): pre = pre[:1]
        main[b][0] = pre + ([] if opt.get('k1nobar') else [I("s_barrier")]) + main[b][0]
    def bar_of(s):
        if s in bpos: return bpos[s]
        return bpos[9] if s < 12 else bpos[12]
    wr = []
    for F in range(256):
        s = F // 16
        if s < 8:
            kk, cb = (F % 16) // 8, F % 8
            a = TRK + cb; off = SLOTW[s % 3] + kk * 8192; o2 = 1024
        else:
            kk, cb = (F % 16) // 4, F % 4
            base = VBASE[s]; a = TRV + cb if base < 65536 else (TRK + cb if base < 131072 else TRK + 4 + cb)
            off = base % 65536 + kk * 4096; o2 = 512
        lo = max(4 * (F - 8) + 3, bar_of(s) - 1 if s > 0 else -1)
        hi = 4 * (F - F % 2) - 5
        if s + 1 in bpos and s + 1 <= 8: hi = min(hi, bpos[s + 1] - 5)
        if F < 2: lo = hi = -1
        tg = max(lo, 4 * F - 18)
        wr.append(at(I(f"ds_read_b64_tr_b16 {vr(ring(F),2)}, v{a} offset:{off}"), lo, hi, tg))
        wr.append(at(I(f"ds_read_b64_tr_b16 {vr(ring(F)+2,2)}, v{a} offset:{off+o2}"), lo, hi, tg))
    lastK = wr[2 * 127 + 1][0].hi
    adj = [at(I(f"v_add_u32 v{TRK+j}, {0x10000 if j < 4 else 0x20000}, v{TRV + j % 4}"), lastK + 1, 600, 540 + 2 * j) for j in range(8)]
    cr = []
    for T in range(16):
        s, tp = T // 2, T % 2
        for kb in range(4):
            a = CR + tp + (2 if s % 3 == 2 else 0); off = (SLOTC[s % 3] % 65536) + kb * 2048
            x = I(f"ds_read_b128 {cf(T,kb)}, v{a} offset:{off}")
            use = 32 * T
            if T == 0: g = at(x, -1, -1, -1)
            else:
                g = at(x, None, use - 6, use - 30 + 4 * kb)
                if tp == 0 and kb == 0: g = at([need(f"C{s}"), x], None, use - 6, use - 30)
            cr.append(g)
    dm = []
    for s in range(1, 9):
        if s <= 5: gs = dma_w(s + 2) + dma_c(s + 2)
        elif s == 6: gs = dma_w(9) + dma_w(10) + dma_w(11)
        elif s == 7: gs = dma_w(12) + dma_w(13) + dma_w(14)
        else: gs = dma_w(15)
        gs = spread(gs, bpos[s], bpos[s] + (opt.get('k1span', 44) if s < 8 else 16))
        for g in gs: g[0].lo = bpos[s] - 1; g[0].hi = bpos[s] + 62
        dm += gs
    ln = []
    A = lambda t: ln.append([I(t)])
    for j in range(12):
        A(f"v_lshlrev_b32 v{XF+2*j}, 16, v{XR+j}"); A(f"v_and_b32 v{XF+2*j+1}, 0xffff0000, v{XR+j}")
    A(f"v_add_f32 v{LS}, v{XF}, v{XF+1}")
    for j in range(2, 24): A(f"v_add_f32 v{LS}, v{LS}, v{XF+j}")
    def allred(r):
        for k in (2, 4, 8): A(f"v_add_f32_dpp v{r}, v{r}, v{r} row_ror:{k} row_mask:0xf bank_mask:0xf")
        for sw in ("16", "32"):
            A(f"v_mov_b32 v{LT}, v{r}"); A(f"v_permlane{sw}_swap_b32 v{LT}, v{r}"); A(f"v_add_f32 v{r}, v{r}, v{LT}")
    allred(LS)
    A(f"v_mul_f32 v{LM}, {fb(1/640)}, v{LS}")
    A(f"v_cndmask_b32 v{LT}, 0, v{LM}, s[58:59]")
    for j in range(24): A(f"v_sub_f32 v{XF+j}, v{XF+j}, v{LM if j < 16 else LT}")
    A(f"v_mul_f32 v{LS}, v{XF}, v{XF}")
    for j in range(1, 24): A(f"v_fmac_f32 v{LS}, v{XF+j}, v{XF+j}")
    allred(LS)
    A(f"v_mov_b32 v{LT}, {fb(1e-5)}"); A(f"v_fmac_f32 v{LT}, {fb(1/640)}, v{LS}"); A(f"v_rsq_f32 v{LT}, v{LT}"); A(f"v_mul_f32 v{LT}, {fb(C0)}, v{LT}")
    for j in range(24): A(f"v_mul_f32 v{XF+j}, v{XF+j}, v{LT}")
    for j in range(12): A(f"v_cvt_pk_bf16_f32 v{XR+j}, v{XF+2*j}, v{XF+2*j+1}")
    A(f"buffer_store_dwordx4 v[{XR}:{XR+3}], v{LC}, s[{sXN}:{sXN+3}], 0 offen {STF}")
    A(f"buffer_store_dwordx4 v[{XR+4}:{XR+7}], v{LC}, s[{sXN}:{sXN+3}], s{s8k} offen {STF}")
    A(f"buffer_store_dwordx4 v[{XR+8}:{XR+11}], v{LD}, s[{sXN}:{sXN+3}], s{s16k} offen {STF}")
    spread(ln, 130, 470)
    for g in ln: g[0].lo = 128; g[0].hi = 500
    so = ["0", f"s{s4k}", f"s{s8k}", f"s{s12k}"]
    def epi_k():
        o = []
        for kb in range(4):
            for T in range(4):
                b = kb * 32 + 8 * T
                o += [[x] for x in pack4(b)]
                o.append([I(f"buffer_store_dwordx4 {vr(b,4)}, v{VL16}, s[{sKF}:{sKF+3}], {so[kb]} offen offset:{T*1024} {STF}")])
        return o
    def epi_v(gam):
        o = []
        for cb in range(4):
            for s2 in range(2):
                b = (ACC1 if gam == 0 else 0) + cb * 16 + 8 * s2
                o += [[x] for x in pack4(b)]
                o.append([I(f"buffer_store_dwordx4 {vr(b,4)}, v{VL16}, s[{sVF}:{sVF+3}], {so[2*s2+gam]} offen offset:{cb*1024} {STF}")])
        return o
    ek = spread(epi_k(), 520, 750)
    for g in ek: g[0].lo = 518; g[0].hi = 762
    ev = spread(epi_v(0), 776, 960)
    for g in ev: g[0].lo = 774; g[0].hi = 1010
    el = epi_v(1)
    if st:
        for k, m in enumerate((64, 128, 256, 512, 768)): main[m][0].append(stamp(3 + k))
    e.ext([need("W0", "C0"), I("s_barrier")])
    if st: e.ext([stamp(2)])
    if opt.get('k1nodma'): dm = []
    if opt.get('k1noep'): ek = []; ev = []
    if opt.get('k1noln'): ln = []
    if opt.get('k1nowr'): wr = wr[:4]
    e.ext(schedule(main, [dm, wr, cr, adj, ln, ek + ev], name=name, verbose=True))
    e.ext(flat(el))
    if st:
        e.ext([stamp(8), I("s_waitcnt vmcnt(0)"), stamp(9), stamp(10, True)])
        stamp_store(e, 11, 0, pWS, name=sW)
    e(f"{name}_end:\ns_endpgm")
    return finalize(e.P, name)
```

```python
import sys, os
sys.path.insert(0, os.path.dirname(__file__))
from common import *
import k1
def build(out, which=("k1",), opt=None):
    opt = opt or {}
    single = len(which) == 1 and opt.get('final')
    hdr = []; body = ['.amdgcn_target "amdgcn-amd-amdhsa--gfx950"']
    for k in which:
        nm = {"k1": "kvproj_kernel", "k2": "attn_kernel", "k3": "outproj_kernel", "mk": "fused_kernel"}[k]
        if single: nm = "recurrent_scan__compressed_kv_cla__dense_activation_silu__prompt_kernel"
        mod = __import__(k)
        P = getattr(mod, "gen_" + k)(nm, opt)
        hdr.append(f"; @launch {'' if single else 'kernel=' + nm + ' '}grid=(256,1,1) block=(256,1,1) lds={opt.get('lds_'+k, 163840)}")
        body += kernel_text(nm, P)
    open(out, "w").write("\n".join(hdr + body) + "\n")
if __name__ == "__main__":
    out = sys.argv[1]; which = sys.argv[2].split(",")
    opt = dict((a.split("=")[0], int(a.split("=")[1])) for a in sys.argv[3:])
    build(out, which, opt)
```

```python
import re

REG = re.compile(r'^(-|\|)?([vas])(\d+)\|?$')
RNG = re.compile(r'^-?([vas])\[(\d+):(\d+)\]$')

def regs_of(op):
    op = op.strip()
    m = RNG.match(op)
    if m: return [f"{m.group(1)}{i}" for i in range(int(m.group(2)), int(m.group(3)) + 1)]
    m = REG.match(op)
    if m: return [f"{m.group(2)}{m.group(3)}"]
    if op.startswith('abs(') or op.startswith('-abs('):
        return regs_of(op[op.index('(') + 1:-1])
    if op in ('vcc', 'm0', 'exec', 'scc'): return [op]
    if op in ('vcc_lo', 'vcc_hi'): return ['vcc']
    if op in ('exec_lo', 'exec_hi'): return ['exec']
    return []

TRANS = ('v_exp_f32', 'v_log_f32', 'v_rcp_f32', 'v_rsq_f32', 'v_sqrt_f32', 'v_sin_f32', 'v_cos_f32')

class Ins:
    __slots__ = ('t', 'kind', 'op', 'rd', 'wr', 'cost', 'tag', 'need', 'lo', 'hi', 'tgt', 'ops', 'srcc', 'ab', 'dpp', 'vm', 'lg', 'cover', 'early', 'deps')
    def __init__(self, t, tag=None, need=None):
        self.t = t.strip(); self.tag = tag; self.need = need
        self.lo = None; self.hi = None; self.tgt = None; self.srcc = []; self.ab = []; self.dpp = False
        self.vm = None; self.lg = None; self.cover = 0; self.early = 0; self.deps = []
        self.parse()
    def __repr__(self): return self.t
    def parse(self):
        t = self.t
        if t.endswith(':'):
            self.kind = 'label'; self.op = ''; self.rd = []; self.wr = []; self.cost = 0; self.ops = []; return
        if t.startswith('.') or t.startswith(';'):
            self.kind = 'dir'; self.op = ''; self.rd = []; self.wr = []; self.cost = 0; self.ops = []; return
        if t.startswith('@need'):
            self.kind = 'need'; self.op = ''; self.rd = []; self.wr = []; self.cost = 1; self.ops = []; return
        sp = t.split(None, 1)
        op = sp[0]; rest = sp[1] if len(sp) > 1 else ''
        base = re.sub(r'_(e32|e64|dpp|sdwa)$', '', op)
        self.op = base
        ops = []; cur = ''; d = 0
        for ch in rest:
            if ch in '[(': d += 1
            if ch in '])': d -= 1
            if ch == ',' and d == 0: ops.append(cur.strip()); cur = ''
            else: cur += ch
        if cur.strip(): ops.append(cur.strip())
        mods = ''
        if ops:
            last = ops[-1].split(None, 1)
            ops[-1] = last[0]; mods = last[1] if len(last) > 1 else ''
        self.ops = ops
        R = [regs_of(o) for o in ops]
        allr = [r for x in R for r in x]
        rd = []; wr = []; cost = 1
        if base.startswith('v_mfma'):
            kind = 'mfma'; wr = R[0]; rd = R[1] + R[2] + R[3]; self.srcc = R[3]; self.ab = R[1] + R[2]; cost = 2
        elif base.startswith('ds_read') :
            kind = 'ds_r'; wr = R[0]; rd = R[1]
        elif base.startswith('ds_write'):
            kind = 'ds_w'; rd = allr
        elif base.startswith('ds_bpermute') or base.startswith('ds_swizzle'):
            kind = 'ds_r'; wr = R[0]; rd = [r for x in R[1:] for r in x]
        elif base.startswith('buffer_load') or base.startswith('global_load'):
            if re.search(r'\blds\b', mods): kind = 'vdma'; rd = allr + ['m0']
            else: kind = 'vload'; wr = R[0]; rd = [r for x in R[1:] for r in x]
            cost = 2
        elif base.startswith('buffer_store') or base.startswith('global_store'):
            kind = 'vstore'; rd = allr; cost = 2
        elif base.startswith('buffer_atomic') or base.startswith('global_atomic'):
            kind = 'vstore'; rd = allr; cost = 2
            if re.search(r'\bsc0\b', mods): kind = 'vload'; wr = R[0]
        elif base in ('buffer_inv', 'buffer_wbl2'):
            kind = 'vstore'; cost = 2
        elif base.startswith('s_load') or base in ('s_memtime', 's_memrealtime'):
            kind = 'smem'; wr = R[0]; rd = [r for x in R[1:] for r in x]
        elif base == 's_waitcnt':
            kind = 'wait'
            m = re.search(r'vmcnt\((\d+)\)', t); self.vm = int(m.group(1)) if m else None
            m = re.search(r'lgkmcnt\((\d+)\)', t); self.lg = int(m.group(1)) if m else None
        elif base == 's_barrier': kind = 'bar'
        elif base == 's_nop': kind = 'nop'; cost = int(ops[0], 0) + 1
        elif base in ('s_endpgm',): kind = 'end'
        elif base == 's_branch' or base.startswith('s_cbranch'):
            kind = 'branch'
            if 'scc' in base: rd = ['scc']
            if 'vcc' in base: rd = ['vcc']
            if 'exec' in base: rd = ['exec']
        elif base in ('s_setprio', 's_sleep'): kind = 'salu'
        elif base.startswith('s_cmp'):
            kind = 'salu'; rd = allr; wr = ['scc']
        elif base.startswith('s_'):
            kind = 'salu'; wr = list(R[0]); rd = [r for x in R[1:] for r in x]
            if base.startswith(('s_add', 's_sub', 's_and', 's_or', 's_xor', 's_lshl', 's_lshr', 's_ashr', 's_min', 's_max', 's_not', 's_bfe', 's_andn2', 's_orn2')): wr.append('scc')
            if base.startswith(('s_addc', 's_subb', 's_cselect', 's_cmov')): rd.append('scc')
            if base.startswith(('s_addk', 's_mulk', 's_cmov', 's_bitset')): rd += R[0]
            if 'saveexec' in base: rd.append('exec'); wr.append('exec')
        elif base.startswith('v_'):
            kind = 'trans' if base in TRANS else 'valu'
            if kind == 'trans': cost = 2
            if base.startswith('v_cmp'):
                wr = R[0]; rd = [r for x in R[1:] for r in x]
            elif base.startswith('v_permlane') and 'swap' in base:
                wr = R[0] + R[1]; rd = R[0] + R[1]
            elif base in ('v_add_co_u32', 'v_sub_co_u32', 'v_addc_co_u32'):
                wr = R[0] + R[1]; rd = [r for x in R[2:] for r in x]
            else:
                wr = R[0]; rd = [r for x in R[1:] for r in x]
                if base.startswith(('v_fmac', 'v_writelane', 'v_dot2c', 'v_pk_fmac')): rd = rd + R[0]
                if base == 'v_cndmask_b32' and len(ops) == 3: rd.append('vcc')
            if op.endswith('_dpp') or 'row_' in mods or 'quad_perm' in mods:
                self.dpp = True; rd = rd + R[0]
            if base.startswith('v_pk_'): cost = 2
        else:
            raise ValueError('cannot parse: ' + t)
        self.kind = kind; self.rd = rd; self.wr = wr; self.cost = cost

def I(t, **k): return Ins(t, **k)
def need(*res, cover=0):
    x = Ins('@need', need=list(res)); x.cover = cover; return x
def vr(b, n, p='v'): return f"{p}{b}" if n == 1 else f"{p}[{b}:{b + n - 1}]"
def rr(p, b, n): return [f"{p}{i}" for i in range(b, b + n)]

MEM = ('ds_r', 'ds_w', 'vload', 'vdma', 'vstore')

def schedule(main, streams, budget=2, name='', verbose=False, thr=2, refine=0):
    M = len(main)
    S = [[[g] if isinstance(g, Ins) else g for g in st] for st in streams]
    for gs in S:
        h = M - 1
        for g in reversed(gs):
            x = g[0]
            if x.hi is None: x.hi = M - 1
            x.hi = min(x.hi, h); h = x.hi
    for it in range(4):
        for gs in S:
            h = M - 1
            for g in reversed(gs):
                x = g[0]; x.hi = min(x.hi, h); h = x.hi
                for d in x.deps: d.hi = min(d.hi if d.hi is not None else M - 1, x.hi)
    for gs in S:
        l = -1
        for g in gs:
            x = g[0]
            if x.lo is None: x.lo = -1
            x.lo = max(x.lo, l); l = x.lo
            if x.tgt is None: x.tgt = x.lo
            x.tgt = max(x.lo, min(x.tgt, x.hi))
            if x.lo > x.hi: raise ValueError(f"{name}: lo>hi for {x} lo={x.lo} hi={x.hi}")
    pos = [0] * len(S)
    done = {}
    gcost = lambda g: sum(x.cost for x in g)
    ismem = lambda g: any(x.kind in MEM for x in g)
    isvm = lambda g: any(x.kind in ('vload', 'vdma', 'vstore') for x in g)
    SC = ('salu', 'need', 'wait', 'bar', 'branch', 'nop', 'smem')
    pre = [sum(x.cost for x in main[g + 1][0]) if g + 1 < M else 0 for g in range(-1, M)]
    lead = lambda g: g[0].kind in SC
    for gs in S:
        for k in range(1, len(gs)):
            if gs[k][0].kind == 'vdma' and 'm0' in gs[k - 1][-1].wr: gs[k][0].deps = gs[k][0].deps + [gs[k - 1][0]]
    place = [[None] * len(gs) for gs in S]
    for gap in range(-1, M):
        room = budget - max(0, pre[gap + 1] - 1) if gap >= 0 else 0
        free = gap >= 0 and pre[gap + 1] == 0
        nmem = 0; here = set()
        while True:
            best = None
            for si, gs in enumerate(S):
                if pos[si] >= len(gs): continue
                g = gs[pos[si]]; x = g[0]
                if x.lo > gap or any(id(d) not in done for d in x.deps): continue
                if x.hi > gap and any(done[id(d)] == gap for d in x.deps): continue
                lag = gap - x.tgt; c = gcost(g) + (1 if ismem(g) and nmem else 0)
                if free and lead(g) and si not in here: c -= 1
                if x.hi <= gap: key = (0, 0, si)
                elif gap < 0: continue
                elif c <= room and lag >= 0: key = (1, -lag, si)
                elif lag > thr and room >= 0 and c <= room + 1 and not (ismem(g) and nmem): key = (2, -lag, si)
                elif lag > 3 * thr and room == budget: key = (2, -lag, si)
                elif c <= room and lag >= -x.early and not (ismem(g) and nmem): key = (3, -lag, si)
                else: continue
                if best is None or key < best[0]: best = (key, si, g, c)
            if best is None: break
            _, si, g, c = best
            if free and lead(g) and si not in here: free = False
            here.add(si)
            place[si][pos[si]] = gap; pos[si] += 1; room -= c
            if ismem(g): nmem += 1
            for x in g: done[id(x)] = gap
    for si, gs in enumerate(S):
        assert pos[si] == len(gs), (name, si, pos[si], len(gs), gs[pos[si]])
    load = [0] * (M + 1); mem = [0] * (M + 1); sca = [0] * (M + 1)
    for si, gs in enumerate(S):
        for k, g in enumerate(gs): load[place[si][k] + 1] += gcost(g); mem[place[si][k] + 1] += ismem(g); sca[place[si][k] + 1] += lead(g)
    def cyc(i):
        t = load[i] + max(0, mem[i] - 1) + pre[i]
        return 4 * t if i == 0 else max(4 * (budget + 2), 4 * (2 + t - (1 if pre[i] or sca[i] else 0)))
    if refine:
        import random, math
        rnd = random.Random(1)
        where = {id(x): (si, k) for si, gs in enumerate(S) for k, g in enumerate(gs) for x in g}
        users = {}
        for si, gs in enumerate(S):
            for k, g in enumerate(gs):
                for d in g[0].deps: users.setdefault(where[id(d)], []).append((si, k))
        items = [(si, k) for si, gs in enumerate(S) for k in range(len(gs))]
        vms = [it for it in items if isvm(S[it[0]][it[1]])]
        def soft(si, k, p):
            g = S[si][k]; x = g[0]; c = 0.0
            if any(y.kind == 'ds_r' for y in g): c += 0.6 * max(0, p - (x.hi - 3)) + 0.3 * max(0, x.tgt - 8 - p)
            if isvm(g):
                c += 0.15 * max(0, p - x.tgt - 4)
                for (sj, j) in vms:
                    if (sj, j) != (si, k) and abs(place[sj][j] - p) < 4: c += 1.5 * (4 - abs(place[sj][j] - p))
            return c
        T0 = 3.0
        for it in range(refine):
            T = T0 * (1 - it / refine) + 0.05
            si, k = items[rnd.randrange(len(items))]; g = S[si][k]; x = g[0]; p = place[si][k]
            q = p + rnd.choice((-3, -2, -1, -1, 1, 1, 2, 3))
            lo = max(x.lo, 0 if p >= 0 else -1, place[si][k - 1] if k else -1, *[place[where[id(d)][0]][where[id(d)][1]] + 1 for d in x.deps])
            hi = min(x.hi, place[si][k + 1] if k + 1 < len(S[si]) else M - 1, *[place[a][b] - 1 for a, b in users.get((si, k), [])])
            if q < lo or q > hi: continue
            c, m = gcost(g), ismem(g); l_ = lead(g)
            old = cyc(p + 1) + cyc(q + 1) + soft(si, k, p)
            load[p + 1] -= c; mem[p + 1] -= m; load[q + 1] += c; mem[q + 1] += m; sca[p + 1] -= l_; sca[q + 1] += l_
            new = cyc(p + 1) + cyc(q + 1) + soft(si, k, q)
            if new <= old or rnd.random() < math.exp((old - new) / T): place[si][k] = q
            else: load[p + 1] += c; mem[p + 1] += m; load[q + 1] -= c; mem[q + 1] -= m; sca[p + 1] += l_; sca[q + 1] -= l_
    bygap = [[] for _ in range(M + 1)]
    for si, gs in enumerate(S):
        for k, g in enumerate(gs): bygap[place[si][k] + 1].append((si, g))
    out = []
    for gap in range(-1, M):
        if gap >= 0: out.append(main[gap][1])
        placed = bygap[gap + 1]
        ids = {id(x) for _, g in placed for x in g}
        todo = list(placed); placed = []
        while todo:
            blocked = set()
            for y in todo:
                if y[0] not in blocked and not any(id(d) in ids for d in y[1][0].deps): break
                blocked.add(y[0])
            else: raise AssertionError(name)
            todo.remove(y); placed.append(y); ids -= {id(x) for x in y[1]}
        nxt = main[gap + 1][0] if gap + 1 < M else []
        if gap >= 0: out.extend(nxt)
        if gap >= 0 and not pre[gap + 1]:
            seen = set()
            for j, (si, g) in enumerate(placed):
                if lead(g) and si not in seen and not rest_conflict([y[1] for y in placed[:j]], g) and not set(id(d) for d in g[0].deps) & set(id(x) for y in placed[:j] for x in y[1]):
                    if len(g) == 1 or ismem(g): out.extend(g); placed.pop(j)
                    else: placed.insert(0, placed.pop(j))
                    break
                seen.add(si)
        order = []; rest = []; seen = set()
        for si, g in placed:
            if ismem(g) and si not in seen and not rest_conflict(rest, g): order.append(g)
            else: rest.append(g); seen.add(si)
        for g in order + rest: out.extend(g)
        if gap < 0: out.extend(nxt)
    if verbose: print(f"  sched {name}: mfma={M} ideal={16*M} est={sum(cyc(i) for i in range(M + 1))}")
    return out

def rest_conflict(rest, g):
    rd = set(r for x in g for r in x.rd); wr = set(r for x in g for r in x.wr)
    for h in rest:
        for x in h:
            if set(x.wr) & (rd | wr) or set(x.rd) & wr: return True
    return False

def spread(groups, lo, hi):
    gs = [[g] if isinstance(g, Ins) else g for g in groups]
    tot = sum(sum(x.cost for x in g) for g in gs) or 1
    acc = 0
    for g in gs:
        g[0].tgt = int(lo + (hi - lo) * acc / tot + 1e-9)
        acc += sum(x.cost for x in g)
    return gs

def build_cfg(P):
    labels = {x.t[:-1]: i for i, x in enumerate(P) if x.kind == 'label'}
    succ = [[] for _ in P]
    for i, x in enumerate(P):
        if x.kind == 'end': continue
        if x.kind == 'branch':
            succ[i].append(labels[x.ops[0]])
            if x.op != 's_branch' and i + 1 < len(P): succ[i].append(i + 1)
        elif i + 1 < len(P): succ[i].append(i + 1)
    pred = [[] for _ in P]
    for i, s in enumerate(succ):
        for j in s: pred[j].append(i)
    return succ, pred

def insert_waits(P):
    succ, pred = build_cfg(P)
    n = len(P)
    W = [[None, None] for _ in P]
    IN = [None] * n
    IN[0] = ({}, {})
    work = [0]
    def step(i, st):
        vm, lg = dict(st[0]), dict(st[1])
        x = P[i]
        touch = set(x.rd) | set(x.wr)
        if x.kind == 'need': touch = set(x.need)
        def req(d):
            k = [d[r] for r in touch if r in d]
            return min(k) if k else None
        a = req(vm); b = req(lg)
        if x.kind in ('vload',):
            k = [vm[r] for r in x.rd if r in vm]; a = min(k) if k else None
        if x.kind == 'ds_r':
            k = [lg[r] for r in x.rd if r in lg]; b = min(k) if k else None
        if 'SMEM' in lg and b is not None: b = 0
        if a is not None: a = min(a, 63); W[i][0] = a if W[i][0] is None else min(W[i][0], a)
        if b is not None: b = min(b, 15); W[i][1] = b if W[i][1] is None else min(W[i][1], b)
        a, b = W[i]
        if x.kind == 'wait':
            if x.vm is not None: a = x.vm if a is None else min(a, x.vm)
            if x.lg is not None: b = x.lg if b is None else min(b, x.lg)
        if a is not None: vm = {r: k for r, k in vm.items() if k < a}
        if b is not None:
            if b == 0: lg = {}
            elif 'SMEM' not in lg: lg = {r: k for r, k in lg.items() if k < b}
        if x.kind in ('vload', 'vdma', 'vstore'):
            vm = {r: k + 1 for r, k in vm.items()}
            for r in x.wr: vm[r] = 0
            if x.tag: vm[x.tag] = 0
        elif x.kind in ('ds_r', 'ds_w'):
            lg = {r: k + 1 for r, k in lg.items()}
            for r in x.wr: lg[r] = 0
            if x.tag: lg[x.tag] = 0
        elif x.kind == 'smem':
            lg['SMEM'] = 0
            for r in x.wr: lg[r] = 0
        return vm, lg
    def join(a, b):
        ch = False; res = []
        for da, db in zip(a, b):
            d = dict(da)
            for r, k in db.items():
                if r not in d or k < d[r]: d[r] = k; ch = True
            res.append(d)
        return tuple(res), ch
    for it in range(50):
        IN = [None] * n; IN[0] = ({}, {})
        Wold = [list(w) for w in W]
        work = [0]; cnt = 0
        while work:
            i = work.pop(); cnt += 1
            while True:
                o = step(i, IN[i])
                nx = None
                for j in succ[i]:
                    if IN[j] is None: IN[j] = o; ch = True
                    else: IN[j], ch = join(IN[j], o)
                    if ch:
                        if nx is None: nx = j
                        else: work.append(j)
                if nx is None: break
                i = nx
        if W == Wold: break
    out = []; nins = 0
    for i, x in enumerate(P):
        a, b = W[i]
        if a is not None or b is not None:
            if x.kind == 'wait':
                a = x.vm if a is None else (a if x.vm is None else min(a, x.vm))
                b = x.lg if b is None else (b if x.lg is None else min(b, x.lg))
            s = 's_waitcnt' + (f' vmcnt({a})' if a is not None else '') + (f' lgkmcnt({b})' if b is not None else '')
            w = Ins(s)
            if x.kind not in ('need', 'wait'): nins += 1; w.tag = 'auto'
            out.append(w)
            if x.kind == 'wait': continue
        if x.kind != 'need': out.append(x)
    return out, nins

def states(x):
    if x.kind in ('label', 'dir', 'need'): return 0
    if x.kind == 'nop': return x.cost
    return 1

def hazard_need(p, x):
    n = 0
    pw = set(p.wr); xr = set(x.rd); xw = set(x.wr)
    pv = p.kind in ('valu', 'trans'); xv = x.kind in ('valu', 'trans')
    xmem = x.kind in MEM
    if p.kind == 'mfma':
        big = '32x32' in p.op
        if x.kind == 'mfma':
            if pw & set(x.ab): n = max(n, 12 if big else 8)
            if pw & set(x.srcc) and not (list(p.wr) == list(x.srcc) and p.op == x.op): n = max(n, 10 if big else 6)
        elif xv or xmem:
            if pw & (xr | xw): n = max(n, 12 if big else 8)
        if xv and set(p.srcc) & xw: n = max(n, 7 if big else 3)
    if pv:
        vw = set(r for r in pw if r[0] in 'va' and r != 'vcc')
        sw = pw - vw
        if x.kind == 'mfma' and vw & xr: n = max(n, 2)
        if x.kind == 'mfma' and 'exec' in pw: n = max(n, 4)
        if p.kind == 'trans' and x.kind == 'valu' and vw & xr: n = max(n, 1)
        if xv and x.op in ('v_readlane_b32', 'v_readfirstlane_b32') and vw & xr: n = max(n, 1)
        if xv and (x.dpp or x.op.startswith('v_permlane')) and vw & xr: n = max(n, 2)
        if xv and sw & xr: n = max(n, 4 if x.op in ('v_readlane_b32', 'v_writelane_b32') else 2)
        if x.kind in ('vload', 'vdma', 'vstore') and sw & xr: n = max(n, 5)
        if x.kind == 'salu' and sw & xr: n = max(n, 1)
    if p.kind == 'salu' and 'm0' in pw and x.kind == 'vdma': n = max(n, 1)
    if p.kind == 'vstore' and ('x4' in p.op or 'x3' in p.op):
        data = set(regs_of(p.ops[0] if p.op.startswith('buffer') else p.ops[1]))
        if data & xw: n = max(n, 2 if xv else 1)
    return n

def insert_nops(P):
    total = 0
    for it in range(4):
        succ, pred = build_cfg(P)
        add = {}
        for i, x in enumerate(P):
            if x.kind in ('label', 'dir', 'nop', 'wait', 'bar', 'branch', 'end'): continue
            worst = 0
            stack = [(j, 0) for j in pred[i]]; seen = {}
            while stack:
                j, d = stack.pop()
                if d >= 12 or seen.get(j, 99) <= d: continue
                seen[j] = d
                p = P[j]
                h = hazard_need(p, x)
                if h - d > worst: worst = h - d
                d2 = d + states(p) + add.get(j, 0)
                for k in pred[j]: stack.append((k, d2))
            if worst > 0: add[i] = worst
        if not add: break
        out = []
        for i, x in enumerate(P):
            if i in add:
                y = Ins(f's_nop {add[i] - 1}'); y.tag = 'auto'; out.append(y); total += add[i]
            out.append(x)
        P = out
    return P, total

def finalize(P, name='', verbose=True):
    P, nw = insert_waits(P)
    P, nn = insert_nops(P)
    if verbose:
        nm = sum(1 for x in P if x.kind == 'mfma')
        print(f"{name}: {len(P)} instrs, {nm} mfma, auto waits {nw}, auto nop states {nn}")
    return P

def kernel_text(name, P, vgpr=512, acc=256, sgpr=102):
    L = [".text", f".globl {name}", ".p2align 8", f".type {name},@function", f"{name}:"]
    for x in P:
        L.append(x.t if x.kind == 'label' else "  " + x.t)
    L += ['.section .rodata,"a"', ".p2align 6", f".amdhsa_kernel {name}",
          f"  .amdhsa_next_free_vgpr {vgpr}", f"  .amdhsa_next_free_sgpr {sgpr}", f"  .amdhsa_accum_offset {acc}",
          "  .amdhsa_group_segment_fixed_size 0", "  .amdhsa_kernarg_size 96", "  .amdhsa_user_sgpr_count 2",
          "  .amdhsa_user_sgpr_kernarg_segment_ptr 1", "  .amdhsa_system_sgpr_workgroup_id_x 1",
          ".end_amdhsa_kernel"]
    return L
```

```python
import re

REG = re.compile(r'^(-|\|)?([vas])(\d+)\|?$')
RNG = re.compile(r'^-?([vas])\[(\d+):(\d+)\]$')

def regs_of(op):
    op = op.strip()
    m = RNG.match(op)
    if m: return [f"{m.group(1)}{i}" for i in range(int(m.group(2)), int(m.group(3)) + 1)]
    m = REG.match(op)
    if m: return [f"{m.group(2)}{m.group(3)}"]
    if op.startswith('abs(') or op.startswith('-abs('):
        return regs_of(op[op.index('(') + 1:-1])
    if op in ('vcc', 'm0', 'exec', 'scc'): return [op]
    if op in ('vcc_lo', 'vcc_hi'): return ['vcc']
    if op in ('exec_lo', 'exec_hi'): return ['exec']
    return []

TRANS = ('v_exp_f32', 'v_log_f32', 'v_rcp_f32', 'v_rsq_f32', 'v_sqrt_f32', 'v_sin_f32', 'v_cos_f32')

class Ins:
    __slots__ = ('t', 'kind', 'op', 'rd', 'wr', 'cost', 'tag', 'need', 'lo', 'hi', 'tgt', 'ops', 'srcc', 'ab', 'dpp', 'vm', 'lg', 'cover', 'early', 'deps')
    def __init__(self, t, tag=None, need=None):
        self.t = t.strip(); self.tag = tag; self.need = need
        self.lo = None; self.hi = None; self.tgt = None; self.srcc = []; self.ab = []; self.dpp = False
        self.vm = None; self.lg = None; self.cover = 0; self.early = 0; self.deps = []
        self.parse()
    def __repr__(self): return self.t
    def parse(self):
        t = self.t
        if t.endswith(':'):
            self.kind = 'label'; self.op = ''; self.rd = []; self.wr = []; self.cost = 0; self.ops = []; return
        if t.startswith('.') or t.startswith(';'):
            self.kind = 'dir'; self.op = ''; self.rd = []; self.wr = []; self.cost = 0; self.ops = []; return
        if t.startswith('@need'):
            self.kind = 'need'; self.op = ''; self.rd = []; self.wr = []; self.cost = 1; self.ops = []; return
        sp = t.split(None, 1)
        op = sp[0]; rest = sp[1] if len(sp) > 1 else ''
        base = re.sub(r'_(e32|e64|dpp|sdwa)$', '', op)
        self.op = base
        ops = []; cur = ''; d = 0
        for ch in rest:
            if ch in '[(': d += 1
            if ch in '])': d -= 1
            if ch == ',' and d == 0: ops.append(cur.strip()); cur = ''
            else: cur += ch
        if cur.strip(): ops.append(cur.strip())
        mods = ''
        if ops:
            last = ops[-1].split(None, 1)
            ops[-1] = last[0]; mods = last[1] if len(last) > 1 else ''
        self.ops = ops
        R = [regs_of(o) for o in ops]
        allr = [r for x in R for r in x]
        rd = []; wr = []; cost = 1
        if base.startswith('v_mfma'):
            kind = 'mfma'; wr = R[0]; rd = R[1] + R[2] + R[3]; self.srcc = R[3]; self.ab = R[1] + R[2]; cost = 2
        elif base.startswith('ds_read') :
            kind = 'ds_r'; wr = R[0]; rd = R[1]
        elif base.startswith('ds_write'):
            kind = 'ds_w'; rd = allr
        elif base.startswith('ds_bpermute') or base.startswith('ds_swizzle'):
            kind = 'ds_r'; wr = R[0]; rd = [r for x in R[1:] for r in x]
        elif base.startswith('buffer_load') or base.startswith('global_load'):
            if re.search(r'\blds\b', mods): kind = 'vdma'; rd = allr + ['m0']
            else: kind = 'vload'; wr = R[0]; rd = [r for x in R[1:] for r in x]
            cost = 2
        elif base.startswith('buffer_store') or base.startswith('global_store'):
            kind = 'vstore'; rd = allr; cost = 2
        elif base.startswith('buffer_atomic') or base.startswith('global_atomic'):
            kind = 'vstore'; rd = allr; cost = 2
            if re.search(r'\bsc0\b', mods): kind = 'vload'; wr = R[0]
        elif base in ('buffer_inv', 'buffer_wbl2'):
            kind = 'vstore'; cost = 2
        elif base.startswith('s_load') or base in ('s_memtime', 's_memrealtime'):
            kind = 'smem'; wr = R[0]; rd = [r for x in R[1:] for r in x]
        elif base == 's_waitcnt':
            kind = 'wait'
            m = re.search(r'vmcnt\((\d+)\)', t); self.vm = int(m.group(1)) if m else None
            m = re.search(r'lgkmcnt\((\d+)\)', t); self.lg = int(m.group(1)) if m else None
        elif base == 's_barrier': kind = 'bar'
        elif base == 's_nop': kind = 'nop'; cost = int(ops[0], 0) + 1
        elif base in ('s_endpgm',): kind = 'end'
        elif base == 's_branch' or base.startswith('s_cbranch'):
            kind = 'branch'
            if 'scc' in base: rd = ['scc']
            if 'vcc' in base: rd = ['vcc']
            if 'exec' in base: rd = ['exec']
        elif base in ('s_setprio', 's_sleep'): kind = 'salu'
        elif base.startswith('s_cmp'):
            kind = 'salu'; rd = allr; wr = ['scc']
        elif base.startswith('s_'):
            kind = 'salu'; wr = list(R[0]); rd = [r for x in R[1:] for r in x]
            if base.startswith(('s_add', 's_sub', 's_and', 's_or', 's_xor', 's_lshl', 's_lshr', 's_ashr', 's_min', 's_max', 's_not', 's_bfe', 's_andn2', 's_orn2')): wr.append('scc')
            if base.startswith(('s_addc', 's_subb', 's_cselect', 's_cmov')): rd.append('scc')
            if base.startswith(('s_addk', 's_mulk', 's_cmov', 's_bitset')): rd += R[0]
            if 'saveexec' in base: rd.append('exec'); wr.append('exec')
        elif base.startswith('v_'):
            kind = 'trans' if base in TRANS else 'valu'
            if kind == 'trans': cost = 2
            if base.startswith('v_cmp'):
                wr = R[0]; rd = [r for x in R[1:] for r in x]
            elif base.startswith('v_permlane') and 'swap' in base:
                wr = R[0] + R[1]; rd = R[0] + R[1]
            elif base in ('v_add_co_u32', 'v_sub_co_u32', 'v_addc_co_u32'):
                wr = R[0] + R[1]; rd = [r for x in R[2:] for r in x]
            else:
                wr = R[0]; rd = [r for x in R[1:] for r in x]
                if base.startswith(('v_fmac', 'v_writelane', 'v_dot2c', 'v_pk_fmac')): rd = rd + R[0]
                if base == 'v_cndmask_b32' and len(ops) == 3: rd.append('vcc')
            if op.endswith('_dpp') or 'row_' in mods or 'quad_perm' in mods:
                self.dpp = True; rd = rd + R[0]
            if base.startswith('v_pk_'): cost = 2
        else:
            raise ValueError('cannot parse: ' + t)
        self.kind = kind; self.rd = rd; self.wr = wr; self.cost = cost

def I(t, **k): return Ins(t, **k)
def need(*res, cover=0):
    x = Ins('@need', need=list(res)); x.cover = cover; return x
def vr(b, n, p='v'): return f"{p}{b}" if n == 1 else f"{p}[{b}:{b + n - 1}]"
def rr(p, b, n): return [f"{p}{i}" for i in range(b, b + n)]

MEM = ('ds_r', 'ds_w', 'vload', 'vdma', 'vstore')

def schedule(main, streams, budget=2, name='', verbose=False, thr=2, refine=0):
    M = len(main)
    S = [[[g] if isinstance(g, Ins) else g for g in st] for st in streams]
    for gs in S:
        h = M - 1
        for g in reversed(gs):
            x = g[0]
            if x.hi is None: x.hi = M - 1
            x.hi = min(x.hi, h); h = x.hi
    for it in range(4):
        for gs in S:
            h = M - 1
            for g in reversed(gs):
                x = g[0]; x.hi = min(x.hi, h); h = x.hi
                for d in x.deps: d.hi = min(d.hi if d.hi is not None else M - 1, x.hi)
    for gs in S:
        l = -1
        for g in gs:
            x = g[0]
            if x.lo is None: x.lo = -1
            x.lo = max(x.lo, l); l = x.lo
            if x.tgt is None: x.tgt = x.lo
            x.tgt = max(x.lo, min(x.tgt, x.hi))
            if x.lo > x.hi: raise ValueError(f"{name}: lo>hi for {x} lo={x.lo} hi={x.hi}")
    pos = [0] * len(S)
    done = {}
    gcost = lambda g: sum(x.cost for x in g)
    ismem = lambda g: any(x.kind in MEM for x in g)
    isvm = lambda g: any(x.kind in ('vload', 'vdma', 'vstore') for x in g)
    pre = [sum(x.cost for x in main[g + 1][0]) if g + 1 < M else 0 for g in range(-1, M)]
    place = [[None] * len(gs) for gs in S]
    for gap in range(-1, M):
        room = budget - pre[gap + 1] if gap >= 0 else 0
        nmem = 0
        while True:
            best = None
            for si, gs in enumerate(S):
                if pos[si] >= len(gs): continue
                g = gs[pos[si]]; x = g[0]
                if x.lo > gap or any(id(d) not in done for d in x.deps): continue
                if x.hi > gap and any(done[id(d)] == gap for d in x.deps): continue
                lag = gap - x.tgt; c = gcost(g) + (1 if ismem(g) and nmem else 0)
                if x.hi <= gap: key = (0, 0, si)
                elif gap < 0: continue
                elif c <= room and lag >= 0: key = (1, -lag, si)
                elif lag > thr and room >= 0 and c <= room + 1 and not (ismem(g) and nmem): key = (2, -lag, si)
                elif lag > 3 * thr and room == budget: key = (2, -lag, si)
                elif c <= room and lag >= -x.early and not (ismem(g) and nmem): key = (3, -lag, si)
                else: continue
                if best is None or key < best[0]: best = (key, si, g, c)
            if best is None: break
            _, si, g, c = best
            place[si][pos[si]] = gap; pos[si] += 1; room -= c
            if ismem(g): nmem += 1
            for x in g: done[id(x)] = gap
    for si, gs in enumerate(S):
        assert pos[si] == len(gs), (name, si, pos[si], len(gs), gs[pos[si]])
    load = [0] * (M + 1); mem = [0] * (M + 1)
    for si, gs in enumerate(S):
        for k, g in enumerate(gs): load[place[si][k] + 1] += gcost(g); mem[place[si][k] + 1] += ismem(g)
    def cyc(i):
        t = load[i] + max(0, mem[i] - 1)
        return 4 * t if i == 0 else max(4 * (budget + 2), 4 * (2 + t + pre[i]))
    if refine:
        import random, math
        rnd = random.Random(1)
        where = {id(x): (si, k) for si, gs in enumerate(S) for k, g in enumerate(gs) for x in g}
        users = {}
        for si, gs in enumerate(S):
            for k, g in enumerate(gs):
                for d in g[0].deps: users.setdefault(where[id(d)], []).append((si, k))
        items = [(si, k) for si, gs in enumerate(S) for k in range(len(gs))]
        vms = [it for it in items if isvm(S[it[0]][it[1]])]
        def soft(si, k, p):
            g = S[si][k]; x = g[0]; c = 0.0
            if any(y.kind == 'ds_r' for y in g): c += 0.6 * max(0, p - (x.hi - 3)) + 0.3 * max(0, x.tgt - 8 - p)
            if isvm(g):
                c += 0.15 * max(0, p - x.tgt - 4)
                for (sj, j) in vms:
                    if (sj, j) != (si, k) and abs(place[sj][j] - p) < 4: c += 1.5 * (4 - abs(place[sj][j] - p))
            return c
        T0 = 3.0
        for it in range(refine):
            T = T0 * (1 - it / refine) + 0.05
            si, k = items[rnd.randrange(len(items))]; g = S[si][k]; x = g[0]; p = place[si][k]
            q = p + rnd.choice((-3, -2, -1, -1, 1, 1, 2, 3))
            lo = max(x.lo, 0 if p >= 0 else -1, place[si][k - 1] if k else -1, *[place[where[id(d)][0]][where[id(d)][1]] + 1 for d in x.deps])
            hi = min(x.hi, place[si][k + 1] if k + 1 < len(S[si]) else M - 1, *[place[a][b] - 1 for a, b in users.get((si, k), [])])
            if q < lo or q > hi: continue
            c, m = gcost(g), ismem(g)
            old = cyc(p + 1) + cyc(q + 1) + soft(si, k, p)
            load[p + 1] -= c; mem[p + 1] -= m; load[q + 1] += c; mem[q + 1] += m
            new = cyc(p + 1) + cyc(q + 1) + soft(si, k, q)
            if new <= old or rnd.random() < math.exp((old - new) / T): place[si][k] = q
            else: load[p + 1] += c; mem[p + 1] += m; load[q + 1] -= c; mem[q + 1] -= m
    bygap = [[] for _ in range(M + 1)]
    for si, gs in enumerate(S):
        for k, g in enumerate(gs): bygap[place[si][k] + 1].append((si, g))
    out = []
    for gap in range(-1, M):
        if gap >= 0: out.append(main[gap][1])
        placed = bygap[gap + 1]
        ids = {id(x) for _, g in placed for x in g}
        todo = list(placed); placed = []
        while todo:
            blocked = set()
            for y in todo:
                if y[0] not in blocked and not any(id(d) in ids for d in y[1][0].deps): break
                blocked.add(y[0])
            else: raise AssertionError(name)
            todo.remove(y); placed.append(y); ids -= {id(x) for x in y[1]}
        order = []; rest = []; seen = set()
        for si, g in placed:
            if ismem(g) and si not in seen and not rest_conflict(rest, g): order.append(g)
            else: rest.append(g); seen.add(si)
        for g in order + rest: out.extend(g)
        if gap + 1 < M: out.extend(main[gap + 1][0])
    if verbose: print(f"  sched {name}: mfma={M} ideal={16*M} est={sum(cyc(i) for i in range(M + 1))}")
    return out

def rest_conflict(rest, g):
    rd = set(r for x in g for r in x.rd); wr = set(r for x in g for r in x.wr)
    for h in rest:
        for x in h:
            if set(x.wr) & (rd | wr) or set(x.rd) & wr: return True
    return False

def spread(groups, lo, hi):
    gs = [[g] if isinstance(g, Ins) else g for g in groups]
    tot = sum(sum(x.cost for x in g) for g in gs) or 1
    acc = 0
    for g in gs:
        g[0].tgt = int(lo + (hi - lo) * acc / tot + 1e-9)
        acc += sum(x.cost for x in g)
    return gs

def build_cfg(P):
    labels = {x.t[:-1]: i for i, x in enumerate(P) if x.kind == 'label'}
    succ = [[] for _ in P]
    for i, x in enumerate(P):
        if x.kind == 'end': continue
        if x.kind == 'branch':
            succ[i].append(labels[x.ops[0]])
            if x.op != 's_branch' and i + 1 < len(P): succ[i].append(i + 1)
        elif i + 1 < len(P): succ[i].append(i + 1)
    pred = [[] for _ in P]
    for i, s in enumerate(succ):
        for j in s: pred[j].append(i)
    return succ, pred

def insert_waits(P):
    succ, pred = build_cfg(P)
    n = len(P)
    W = [[None, None] for _ in P]
    IN = [None] * n
    IN[0] = ({}, {})
    work = [0]
    def step(i, st):
        vm, lg = dict(st[0]), dict(st[1])
        x = P[i]
        touch = set(x.rd) | set(x.wr)
        if x.kind == 'need': touch = set(x.need)
        def req(d):
            k = [d[r] for r in touch if r in d]
            return min(k) if k else None
        a = req(vm); b = req(lg)
        if x.kind in ('vload',):
            k = [vm[r] for r in x.rd if r in vm]; a = min(k) if k else None
        if x.kind == 'ds_r':
            k = [lg[r] for r in x.rd if r in lg]; b = min(k) if k else None
        if 'SMEM' in lg and b is not None: b = 0
        if a is not None: a = min(a, 63); W[i][0] = a if W[i][0] is None else min(W[i][0], a)
        if b is not None: b = min(b, 15); W[i][1] = b if W[i][1] is None else min(W[i][1], b)
        a, b = W[i]
        if x.kind == 'wait':
            if x.vm is not None: a = x.vm if a is None else min(a, x.vm)
            if x.lg is not None: b = x.lg if b is None else min(b, x.lg)
        if a is not None: vm = {r: k for r, k in vm.items() if k < a}
        if b is not None:
            if b == 0: lg = {}
            elif 'SMEM' not in lg: lg = {r: k for r, k in lg.items() if k < b}
        if x.kind in ('vload', 'vdma', 'vstore'):
            vm = {r: k + 1 for r, k in vm.items()}
            for r in x.wr: vm[r] = 0
            if x.tag: vm[x.tag] = 0
        elif x.kind in ('ds_r', 'ds_w'):
            lg = {r: k + 1 for r, k in lg.items()}
            for r in x.wr: lg[r] = 0
            if x.tag: lg[x.tag] = 0
        elif x.kind == 'smem':
            lg['SMEM'] = 0
            for r in x.wr: lg[r] = 0
        return vm, lg
    def join(a, b):
        ch = False; res = []
        for da, db in zip(a, b):
            d = dict(da)
            for r, k in db.items():
                if r not in d or k < d[r]: d[r] = k; ch = True
            res.append(d)
        return tuple(res), ch
    for it in range(50):
        IN = [None] * n; IN[0] = ({}, {})
        Wold = [list(w) for w in W]
        work = [0]; cnt = 0
        while work:
            i = work.pop(); cnt += 1
            while True:
                o = step(i, IN[i])
                nx = None
                for j in succ[i]:
                    if IN[j] is None: IN[j] = o; ch = True
                    else: IN[j], ch = join(IN[j], o)
                    if ch:
                        if nx is None: nx = j
                        else: work.append(j)
                if nx is None: break
                i = nx
        if W == Wold: break
    out = []; nins = 0
    for i, x in enumerate(P):
        a, b = W[i]
        if a is not None or b is not None:
            if x.kind == 'wait':
                a = x.vm if a is None else (a if x.vm is None else min(a, x.vm))
                b = x.lg if b is None else (b if x.lg is None else min(b, x.lg))
            s = 's_waitcnt' + (f' vmcnt({a})' if a is not None else '') + (f' lgkmcnt({b})' if b is not None else '')
            w = Ins(s)
            if x.kind not in ('need', 'wait'): nins += 1; w.tag = 'auto'
            out.append(w)
            if x.kind == 'wait': continue
        if x.kind != 'need': out.append(x)
    return out, nins

def states(x):
    if x.kind in ('label', 'dir', 'need'): return 0
    if x.kind == 'nop': return x.cost
    return 1

def hazard_need(p, x):
    n = 0
    pw = set(p.wr); xr = set(x.rd); xw = set(x.wr)
    pv = p.kind in ('valu', 'trans'); xv = x.kind in ('valu', 'trans')
    xmem = x.kind in MEM
    if p.kind == 'mfma':
        big = '32x32' in p.op
        if x.kind == 'mfma':
            if pw & set(x.ab): n = max(n, 12 if big else 8)
            if pw & set(x.srcc) and not (list(p.wr) == list(x.srcc) and p.op == x.op): n = max(n, 10 if big else 6)
        elif xv or xmem:
            if pw & (xr | xw): n = max(n, 12 if big else 8)
        if xv and set(p.srcc) & xw: n = max(n, 7 if big else 3)
    if pv:
        vw = set(r for r in pw if r[0] in 'va' and r != 'vcc')
        sw = pw - vw
        if x.kind == 'mfma' and vw & xr: n = max(n, 2)
        if x.kind == 'mfma' and 'exec' in pw: n = max(n, 4)
        if p.kind == 'trans' and x.kind == 'valu' and vw & xr: n = max(n, 1)
        if xv and x.op in ('v_readlane_b32', 'v_readfirstlane_b32') and vw & xr: n = max(n, 1)
        if xv and (x.dpp or x.op.startswith('v_permlane')) and vw & xr: n = max(n, 2)
        if xv and sw & xr: n = max(n, 4 if x.op in ('v_readlane_b32', 'v_writelane_b32') else 2)
        if x.kind in ('vload', 'vdma', 'vstore') and sw & xr: n = max(n, 5)
        if x.kind == 'salu' and sw & xr: n = max(n, 1)
    if p.kind == 'salu' and 'm0' in pw and x.kind == 'vdma': n = max(n, 1)
    if p.kind == 'vstore' and ('x4' in p.op or 'x3' in p.op):
        data = set(regs_of(p.ops[0] if p.op.startswith('buffer') else p.ops[1]))
        if data & xw: n = max(n, 2 if xv else 1)
    return n

def insert_nops(P):
    total = 0
    for it in range(4):
        succ, pred = build_cfg(P)
        add = {}
        for i, x in enumerate(P):
            if x.kind in ('label', 'dir', 'nop', 'wait', 'bar', 'branch', 'end'): continue
            worst = 0
            stack = [(j, 0) for j in pred[i]]; seen = {}
            while stack:
                j, d = stack.pop()
                if d >= 12 or seen.get(j, 99) <= d: continue
                seen[j] = d
                p = P[j]
                h = hazard_need(p, x)
                if h - d > worst: worst = h - d
                d2 = d + states(p) + add.get(j, 0)
                for k in pred[j]: stack.append((k, d2))
            if worst > 0: add[i] = worst
        if not add: break
        out = []
        for i, x in enumerate(P):
            if i in add:
                y = Ins(f's_nop {add[i] - 1}'); y.tag = 'auto'; out.append(y); total += add[i]
            out.append(x)
        P = out
    return P, total

def finalize(P, name='', verbose=True):
    P, nw = insert_waits(P)
    P, nn = insert_nops(P)
    if verbose:
        nm = sum(1 for x in P if x.kind == 'mfma')
        print(f"{name}: {len(P)} instrs, {nm} mfma, auto waits {nw}, auto nop states {nn}")
    return P

def kernel_text(name, P, vgpr=512, acc=256, sgpr=102):
    L = [".text", f".globl {name}", ".p2align 8", f".type {name},@function", f"{name}:"]
    for x in P:
        L.append(x.t if x.kind == 'label' else "  " + x.t)
    L += ['.section .rodata,"a"', ".p2align 6", f".amdhsa_kernel {name}",
          f"  .amdhsa_next_free_vgpr {vgpr}", f"  .amdhsa_next_free_sgpr {sgpr}", f"  .amdhsa_accum_offset {acc}",
          "  .amdhsa_group_segment_fixed_size 0", "  .amdhsa_kernarg_size 96", "  .amdhsa_user_sgpr_count 2",
          "  .amdhsa_user_sgpr_kernarg_segment_ptr 1", "  .amdhsa_system_sgpr_workgroup_id_x 1",
          ".end_amdhsa_kernel"]
    return L
```

```python
import sys, os
sys.path.insert(0, os.path.dirname(__file__))
from common import *
import k1
HEAD = """
;
; Workgroup b: head h = 4*(b%8) + (b/8)%4, index i = b/32.
"""
def build(out, which=("k1",), opt=None):
    opt = opt or {}
    single = len(which) == 1 and opt.get('final')
    hdr = []; body = ['.amdgcn_target "amdgcn-amd-amdhsa--gfx950"']
    for k in which:
        nm = {"k1": "kvproj_kernel", "k2": "attn_kernel", "k3": "outproj_kernel", "mk": "fused_kernel"}[k]
        if single: nm = "recurrent_scan__compressed_kv_cla__dense_activation_silu__prompt_kernel"
        mod = __import__(k)
        P = getattr(mod, "gen_" + k)(nm, opt)
        hdr.append(f"; @launch {'' if single else 'kernel=' + nm + ' '}grid=(256,1,1) block=(256,1,1) lds={opt.get('lds_'+k, 163840)}")
        body += kernel_text(nm, P)
    if single: hdr = HEAD.strip("\n").split("\n") + hdr
    open(out, "w").write("\n".join(hdr + body) + "\n")
if __name__ == "__main__":
    out = sys.argv[1]; which = sys.argv[2].split(",")
    opt = dict((a.split("=")[0], int(a.split("=")[1])) for a in sys.argv[3:])
    build(out, which, opt)
```

```python
from core import *
import math, struct
XN_OFF  = 0x0000000
KF_OFF  = 0x0300000
VF_OFF  = 0x0380000
CTX_OFF = 0x2300000
HF_OFF  = 0x3300000
WP_OFF  = 0x3A00000
KA = dict(x=0, ckv=8, wq=16, wuk=24, wuv=32, wo=40, bx=48, w1=56, w2=64, out=72, dbg=80, ws=88)
LOG2E = math.log2(math.e)
C0 = (128 ** -0.5) * LOG2E
def fb(x): return "0x%08x" % struct.unpack('<I', struct.pack('<f', x))[0]
MF = "v_mfma_f32_16x16x32_bf16"
STF = "sc0 sc1"

class Em:
    def __init__(self): self.P = []
    def __call__(self, t, **k):
        for l in t.split('\n'):
            l = l.strip()
            if l: self.P.append(Ins(l, **k))
    def ext(self, L): self.P.extend(L)

def srd(e, d, ptr, off_s, num, off_c=0):
    if off_s is None and off_c == 0:
        e(f"s_mov_b32 s{d}, s{ptr}"); e(f"s_mov_b32 s{d+1}, s{ptr+1}")
    elif off_s is None:
        e(f"s_add_u32 s{d}, s{ptr}, {off_c}"); e(f"s_addc_u32 s{d+1}, s{ptr+1}, 0")
    else:
        e(f"s_add_u32 s{d}, s{ptr}, {off_s}"); e(f"s_addc_u32 s{d+1}, s{ptr+1}, 0")
        if off_c:
            e(f"s_add_u32 s{d}, s{d}, {off_c}"); e(f"s_addc_u32 s{d+1}, s{d+1}, 0")
    e(f"s_mov_b32 s{d+2}, {num}"); e(f"s_mov_b32 s{d+3}, 0x20000")

def mf(d, a, b, c):
    return I(f"{MF} {d}, {a}, {b}, {c}")

def at(x, lo=None, hi=None, tgt=None):
    g = x if isinstance(x, list) else [x]
    g[0].lo = lo; g[0].hi = hi; g[0].tgt = tgt
    return g

def pack4(b):
    return [I(f"v_cvt_pk_bf16_f32 v{b+j}, v{b+2*j}, v{b+2*j+1}") for j in range(4)]

ST_OFF = 0x8000000
SB = 64
def stamp(k, real=False):
    return I(f"{'s_memrealtime' if real else 's_memtime'} s[{SB+2*k}:{SB+2*k+1}]")
def stamp_store(e, n, kidx, pws, tmp=250, name=''):
    e("s_waitcnt lgkmcnt(0)")
    e(f"v_mov_b32 v{tmp}, 0")
    for k in range(n): e(f"v_writelane_b32 v{tmp}, s{SB+2*k}, {k}")
    e(f"s_lshl_b32 s60, s2, 7\ns_add_u32 s60, s60, {ST_OFF + kidx * 0x10000}")
    srd(e, 96, pws, "s60", 4 * n)
    e(f"v_mbcnt_lo_u32_b32 v{tmp+1}, -1, 0\nv_mbcnt_hi_u32_b32 v{tmp+1}, -1, v{tmp+1}\nv_lshlrev_b32 v{tmp+1}, 2, v{tmp+1}")
    e(f"s_cmp_eq_u32 s{name}, 0\ns_cselect_b32 s98, s98, 0")
    e(f"buffer_store_dword v{tmp}, v{tmp+1}, s[96:99], 0 offen")
```
